```python
import torch

def _softmax(x, axis=-1):
    return torch.softmax(x, dim=axis)
def _gelu(x):
    return torch.nn.functional.gelu(x, approximate="tanh")
def _silu(x):
    return torch.nn.functional.silu(x)
def _sigmoid(x):
    return torch.sigmoid(x)
def _layernorm(x, axis=-1, eps=1e-5):
    m = x.mean(dim=axis, keepdim=True)
    v = x.var(dim=axis, keepdim=True, unbiased=False)
    return (x - m) / torch.sqrt(v + eps)
def _scatter_add(tgt, idx, src, axis=0):
    return tgt.clone().index_add_(axis, idx, src)
def _segment_sum(src, seg, n):
    out = torch.zeros((n,) + src.shape[1:], dtype=src.dtype)
    return out.index_add_(0, seg, src)
def _pad(x, pw):
    flat = tuple(v for pair in reversed(pw) for v in pair)
    return torch.nn.functional.pad(x, flat)

kernel_name = 'concat_heads__gqa_block_cached__gqa_block_cached__near_ridge'

def setup_inputs():

    _w = (lambda a: (lambda t: t.to(torch.bfloat16) if t.is_floating_point() else t)(torch.as_tensor(a)))
    def _A_setup():
        B, Sq, D = 8, 144, 640
        Hq, Hkv, Sk, Dh = 32, 32, 512, 192
        assert Hq % Hkv == 0, (Hq, Hkv)
        return {
            "x": _w((lambda *s: torch.randn(*s, dtype=torch.bfloat16) * 0.8)(B, Sq, D)),
            "k_cache": _w((lambda *s: torch.randn(*s, dtype=torch.bfloat16) * 0.8)(B, Hkv, Sk, Dh)),
            "v_cache": _w((lambda *s: torch.randn(*s, dtype=torch.bfloat16) * 0.05)(B, Hkv, Sk, Dh)),
            "wq": _w((lambda *s: torch.randn(*s, dtype=torch.bfloat16) * 0.8)(D, Hq * Dh) * (D ** -0.5)),
            "wo": _w((lambda *s: torch.randn(*s, dtype=torch.bfloat16) * 0.05)(Hq * Dh, D) * ((Hq * Dh) ** -0.5)),
        }
    _A_in = _A_setup()

    def _B_setup():
        B, Sq, D = 8, 144, 640
        Hq, Hkv, Sk, Dh = 32, 32, 512, 192
        assert Hq % Hkv == 0, (Hq, Hkv)
        return {
            "x": _w((lambda *s: torch.randn(*s, dtype=torch.bfloat16) * 0.8)(B, Sq, D)),
            "k_cache": _w((lambda *s: torch.randn(*s, dtype=torch.bfloat16) * 0.8)(B, Hkv, Sk, Dh)),
            "v_cache": _w((lambda *s: torch.randn(*s, dtype=torch.bfloat16) * 0.05)(B, Hkv, Sk, Dh)),
            "wq": _w((lambda *s: torch.randn(*s, dtype=torch.bfloat16) * 0.8)(D, Hq * Dh) * (D ** -0.5)),
            "wo": _w((lambda *s: torch.randn(*s, dtype=torch.bfloat16) * 0.05)(Hq * Dh, D) * ((Hq * Dh) ** -0.5)),
        }
    _B_in = _B_setup()

    return {
        "A_x": _A_in["x"],
        "A_k_cache": _A_in["k_cache"],
        "A_v_cache": _A_in["v_cache"],
        "A_wq": _A_in["wq"],
        "A_wo": _A_in["wo"],
        "B_x": _B_in["x"],
        "B_k_cache": _B_in["k_cache"],
        "B_v_cache": _B_in["v_cache"],
        "B_wq": _B_in["wq"],
        "B_wo": _B_in["wo"],
    }

def reference(A_x, A_k_cache, A_v_cache, A_wq, A_wo, B_x, B_k_cache, B_v_cache, B_wq, B_wo):
    def _A_ref(x, k_cache, v_cache, wq, wo):
        B, Sq, D = x.shape
        Hq, Dh = 32, 192
        Hkv = k_cache.shape[1]
        rep = Hq // Hkv
        q = (lambda x, *d: x.permute(*d))((x @ wq).reshape(B, Sq, Hq, Dh), 0, 2, 1, 3)
        k = (lambda x, n, axis: torch.repeat_interleave(x, n, dim=axis))(k_cache, rep, axis=1)
        v = (lambda x, n, axis: torch.repeat_interleave(x, n, dim=axis))(v_cache, rep, axis=1)
        scores = torch.einsum("bhqd,bhkd->bhqk", q, k) * (Dh ** -0.5)
        p = _softmax(scores, axis=-1)
        o = torch.einsum("bhqk,bhkd->bhqd", p, v)
        return (lambda x, *d: x.permute(*d))(o, 0, 2, 1, 3).reshape(B, Sq, Hq * Dh) @ wo

    def _B_ref(x, k_cache, v_cache, wq, wo):
        B, Sq, D = x.shape
        Hq, Dh = 32, 192
        Hkv = k_cache.shape[1]
        rep = Hq // Hkv
        q = (lambda x, *d: x.permute(*d))((x @ wq).reshape(B, Sq, Hq, Dh), 0, 2, 1, 3)
        k = (lambda x, n, axis: torch.repeat_interleave(x, n, dim=axis))(k_cache, rep, axis=1)
        v = (lambda x, n, axis: torch.repeat_interleave(x, n, dim=axis))(v_cache, rep, axis=1)
        scores = torch.einsum("bhqd,bhkd->bhqk", q, k) * (Dh ** -0.5)
        p = _softmax(scores, axis=-1)
        o = torch.einsum("bhqk,bhkd->bhqd", p, v)
        return (lambda x, *d: x.permute(*d))(o, 0, 2, 1, 3).reshape(B, Sq, Hq * Dh) @ wo

    a = _A_ref(A_x, A_k_cache, A_v_cache, A_wq, A_wo)
    b = _B_ref(B_x, B_k_cache, B_v_cache, B_wq, B_wo)
    return torch.concatenate([a, b], axis=-1)
```

```python
import re
class Ins:
    __slots__=("txt","kind","rd","wr","tag","fr","late","cost","lab")
    def __init__(s, txt, kind, rd=(), wr=(), tag=None, cost=None):
        s.txt=txt; s.kind=kind; s.rd=set(rd); s.wr=set(wr); s.tag=tag; s.fr=None; s.late=None
        s.cost = cost if cost is not None else {"mfma32":8,"mfma16":8,"trans":8,"vmem":8,"label":0,"comment":0,"waitvm":4}.get(kind,4)
def R(name, n=1):
    p,i=name[0],int(name[1:]); return [f"{p}{i+k}" for k in range(n)]
def T(name,n):
    p,i=name[0],int(name[1:])
    return name if n==1 else f"{p}[{i}:{i+n-1}]"
def off(name,k): return f"{name[0]}{int(name[1:])+k}"
_opre=re.compile(r"^(-?\|?)([vas])(\d+)\|?$|^([vas])\[(\d+):(\d+)\]$")
def regs_of(op):
    op=op.strip()
    if op in("exec_lo","exec_hi"): return ["exec"]
    if op in("vcc","exec"): return [op]
    if op in("m0","scc"): return [op]
    m=_opre.match(op)
    if not m: return []
    if m.group(2): return [m.group(2)+m.group(3)]
    return [f"{m.group(4)}{i}" for i in range(int(m.group(5)),int(m.group(6))+1)]
TRANS=("v_exp_f32","v_rcp_f32","v_log_f32")
def I(txt, tag=None):
    mn,_,rest=txt.partition(" ")
    ops=[o.strip() for o in rest.split(",")] if rest else []
    last=ops[-1].split() if ops else []
    if ops: ops[-1]=last[0] if last else ""
    rd=[];wr=[]
    if mn.startswith("v_mfma"):
        k="mfma32" if "32x32" in mn else "mfma16"
        wr=regs_of(ops[0]);
        for o in ops[1:4]: rd+=regs_of(o)
        i=Ins(txt,k,rd,wr,tag); i.fr=(set(regs_of(ops[1])+regs_of(ops[2])),set(regs_of(ops[3]))); return i
    if mn.startswith("ds_read"):
        return Ins(txt,"lds",regs_of(ops[1]),regs_of(ops[0]),tag)
    if mn.startswith("ds_write"):
        for o in ops: rd+=regs_of(o)
        return Ins(txt,"lds",rd,[],tag)
    if mn.startswith("buffer_load") or mn.startswith("global_load"):
        if " lds" in txt:
            for o in ops: rd+=regs_of(o)
            return Ins(txt,"vmem",rd+["m0"],[],tag)
        for o in ops[1:]: rd+=regs_of(o)
        return Ins(txt,"vmem",rd,regs_of(ops[0]),tag)
    if mn.startswith("buffer_store") or mn.startswith("buffer_atomic"):
        for o in ops: rd+=regs_of(o)
        return Ins(txt,"vmem",rd,[],tag)
    if mn.startswith("s_"):
        if mn in("s_barrier","s_endpgm") or mn.startswith("s_nop") or mn.startswith("s_waitcnt") or mn.startswith("s_sleep") or mn.startswith("s_setprio"):
            return Ins(txt,"misc",[],[],tag)
        if mn.startswith("s_cbranch") or mn=="s_branch":
            return Ins(txt,"branch",["vcc"] if "vcc" in mn else ["scc"],[],tag)
        if mn.startswith("s_cmp"):
            for o in ops: rd+=regs_of(o)
            return Ins(txt,"salu",rd,["scc"],tag)
        if mn.startswith("s_load") or mn.startswith("s_mem"):
            for o in ops[1:]: rd+=regs_of(o)
            return Ins(txt,"smem",rd,regs_of(ops[0]),tag)
        if mn in("s_setpc_b64",): return Ins(txt,"branch",regs_of(ops[0]),[],tag)
        for o in ops[1:]: rd+=regs_of(o)
        return Ins(txt,"salu",rd+["scc"],regs_of(ops[0])+["scc"],tag)
    if mn.startswith("v_"):
        k="trans" if mn.split("_e")[0] in TRANS or mn in TRANS else "valu"
        wr=regs_of(ops[0])
        for o in ops[1:]: rd+=regs_of(o)
        if mn.startswith("v_permlane"): rd+=wr; wr=wr+regs_of(ops[1]); k="perm"
        if mn.startswith("v_cndmask") and len(ops)==3: rd.append("vcc")
        if mn.startswith("v_fmac") or mn.startswith("v_mac"): rd+=wr
        if mn.startswith("v_readfirstlane") or mn.startswith("v_readlane"): k="rdlane"
        if "dpp" in txt or "row_" in txt or "quad_perm" in txt: k="dpp"; rd+=wr
        return Ins(txt,k,rd,wr,tag)
    raise Exception("unclassified "+txt)
def Label(n): i=Ins(n+":","label"); return i
def WaitVM(tags): i=Ins("","waitvm"); i.tag=set(tags); return i
VALUK=("valu","trans","perm","rdlane","dpp")

class Frag:
    def __init__(s, n, mk, pool="A"): s.n=n; s.mk=mk; s.reg=None; s.uses=0; s.emitted=False; s.pool=pool
class M:
    def __init__(s, op, d, a, b, c=None, na=4):
        s.op=op; s.d=d; s.a=a; s.b=b; s.c=c; s.na=na
        s.fr=[]
        for f in (a,b):
            if isinstance(f,tuple): f=f[0]
            if isinstance(f,Frag): f.uses+=1; s.fr.append(f)
        s.dur=32 if "32x32" in op else 16
    def ins(s):
        nd=16 if s.dur==32 else 4
        g=lambda f: T(off(f[0].reg,f[1]) if isinstance(f,tuple) else f.reg if isinstance(f,Frag) else f, s.na)
        c=s.c if s.c is not None else s.d
        ct=c if c=="0" else T(c,nd)
        return I(f"{s.op} {T(s.d,nd)}, {g(s.a)}, {g(s.b)}, {ct}")
class Pool:
    def __init__(s, base, n): s.free=[off(base,4*k) for k in range(n)]
class Fill:
    def __init__(s, ins, lo, hi, chain=None): s.ins=ins if isinstance(ins,list) else [ins]; s.lo=lo; s.hi=hi; s.chain=chain; s.done=False

def schedule(spine, rstream, fills, pools, LA=200, slack=0):
    out=[]; n=len(spine)
    st=[0]*(n+1)
    for i,m in enumerate(spine): st[i+1]=st[i]+m.dur
    chains={}
    for f in fills: chains.setdefault(f.chain if f.chain is not None else id(f),[]).append(f)
    chains=list(chains.values())
    for c in chains:
        for k in range(len(c)-2,-1,-1): c[k].hi=min(c[k].hi,c[k+1].hi)
    rp=0; carry=0
    def emit_read(item):
        f=item[0]
        if isinstance(f,Frag):
            p=pools[f.pool]
            if not p.free: return None
            f.reg=p.free.pop(0); f.emitted=True
            l=f.mk(f.reg)
        else: l=f
        out.extend(l); return sum(x.cost for x in l)
    for i in range(-1,n):
        if i>=0:
            m=spine[i]
            for f in m.fr: assert f.emitted, ("frag not loaded",i)
            out.append(m.ins())
            for f in m.fr:
                f.uses-=1
                if f.uses==0: pools[f.pool].free.append(f.reg)
            budget=m.dur-8+carry+slack; fullb=12
        else: budget=0; fullb=12
        now=st[i+1] if i>=0 else 0
        while rp<len(rstream):
            tgt=rstream[rp][1]
            must = tgt<=i+1
            if not must and (st[min(tgt,n)]-now>LA or (budget<=0 and st[min(tgt,n)]-now>LA//2)): break
            deps=[d for d in (rstream[rp][2] if len(rstream[rp])>2 else []) if not d.done]
            if deps:
                if not must: break
                for d in deps:
                    if d.done: continue
                    ch=[c for c in chains if d in c][0]
                    while not d.done:
                        f=ch.pop(0); assert f.lo<=i,("dep lo",i,f.lo,f.ins[0].txt); out.extend(f.ins); f.done=True; budget-=sum(x.cost for x in f.ins)
            c=emit_read(rstream[rp])
            if c is None:
                assert not must, ("pool exhausted",i)
                break
            budget-=c; rp+=1
        while True:
            cand=[c for c in chains if c and c[0].lo<=i]
            if i%64==0: chains=[c for c in chains if c]
            if not cand: break
            cand.sort(key=lambda c:c[0].hi)
            c=cand[0]; f=c[0]; cost=sum(x.cost for x in f.ins)
            if f.hi<=i+1 or cost<=budget or (budget>=8 and cost>fullb) or i==n-1:
                out.extend(f.ins); f.done=True; budget-=cost; c.pop(0)
            else:
                ok=[c for c in cand[1:] if sum(x.cost for x in c[0].ins)<=budget]
                if not ok: break
                f=ok[0].pop(0); out.extend(f.ins); f.done=True; budget-=sum(x.cost for x in f.ins)
        carry=min(budget,0) if budget<0 else 0
        carry=max(carry,-24)
    assert rp==len(rstream)
    assert not any(chains)
    return out

def PASS(i): return 8 if i.kind=='mfma32' else (2 if '16x16x16' in i.txt else 4) if i.kind=='mfma16' else 0
def finalize(prog, age=96, stats=None):
    out=[]; lq=[]; vq=[]; t=0
    hist=[]
    pos=0; nn=0; nw=0; lastm=None
    def need(kind_prev, prev, cur):
        k=cur.kind; pk=prev.kind; w=0
        if pk in VALUK:
            if k in("mfma32","mfma16") and prev.wr&cur.rd: w=max(w,2)
            if k=="perm" and prev.wr&cur.rd: w=max(w,2)
            if k=="dpp" and prev.wr&cur.rd: w=max(w,2)
            if k=="rdlane" and prev.wr&cur.rd: w=max(w,1)
            sw={r for r in prev.wr if r[0]=="s" or r=="vcc"}
            if sw&cur.rd:
                if k in VALUK: w=max(w,2)
                if k=="vmem": w=max(w,5)
                if k in("salu","branch"): w=max(w,1)
            if pk=="trans" and prev.wr&cur.rd and (k in VALUK): w=max(w,1)
        if pk in("mfma32","mfma16"):
            big=pk=="mfma32"
            if k in VALUK or k in("vmem","lds"):
                if prev.wr&(cur.rd|cur.wr): w=max(w,12 if big else 8)
                if k in VALUK and prev.fr[1]&cur.wr: w=max(w,7 if big else 3)
            if k in("mfma32","mfma16"):
                if prev.wr&cur.fr[0]: w=max(w,12 if big else 8)
                elif prev.wr&(cur.fr[1]|cur.wr) and not (prev.wr==cur.wr and cur.fr[1] in (cur.wr,set()) and pk==k): w=max(w,10 if big else 6)
        if pk=="salu":
            if "m0" in prev.wr and "m0" in cur.rd: w=max(w,1)
            if "exec" in prev.wr and k in("dpp","perm"): w=max(w,1)
        if pk=="vmem" and prev.txt.startswith(("buffer_store_dwordx4","buffer_store_dwordx3")) and k in VALUK:
            if set(regs_of(prev.txt.split()[1].rstrip(",")))&cur.wr: w=max(w,2)
        return w
    for ins in prog:
        if ins.kind=="waitvm":
            idx=max([j for j,(r,tg) in enumerate(vq) if tg in ins.tag or "*" in ins.tag],default=-1)
            if idx>=0:
                n=len(vq)-1-idx
                assert n<=63
                out.append(I(f"s_waitcnt vmcnt({n})")); vq=vq[idx+1:]; pos+=1; t+=4
            continue
        if ins.kind in("label","comment"): out.append(ins); continue
        use=ins.rd|ins.wr
        j=max([j for j,(r,_) in enumerate(lq) if r&use],default=-1)
        if j>=0:
            while j+1<len(lq) and t-lq[j+1][1]>=age: j+=1
            n=min(len(lq)-1-j,15)
            out.append(I(f"s_waitcnt lgkmcnt({n})")); lq=lq[len(lq)-n:] if n else []; pos+=1; t+=4; nw+=1
        j=max([j for j,(r,_) in enumerate(vq) if r&(use if ins.kind!="vmem" else ins.rd)],default=-1)
        if len(vq)>=63 and ins.kind=="vmem": j=max(j,0)
        if j>=0:
            n=min(len(vq)-1-j,63)
            out.append(I(f"s_waitcnt vmcnt({n})")); vq=vq[len(vq)-n:] if n else []; pos+=1; t+=4
        w=0; ism=ins.kind in("mfma32","mfma16")
        for a,(p,pp) in enumerate(hist):
            nd=need(None,p,ins)
            if nd<=0: continue
            tt=0; lm=PASS(p) or None; prev=pp
            for (x,xp) in hist[a+1:]+[(ins,pos)]:
                tt+=xp-prev; prev=xp
                if PASS(x):
                    if lm is not None and x is not ins: tt=max(tt,lm)
                    lm=tt+PASS(x)
            w=max(w,nd-(tt-1))
        if w>0:
            out.append(I(f"s_nop {w-1}")); pos+=w; t+=4*w; nn+=w
        out.append(ins)
        if ins.txt.startswith("s_waitcnt"):
            m=re.search(r"lgkmcnt\((\d+)\)",ins.txt)
            if m: n=int(m.group(1)); lq=lq[len(lq)-n:] if n and n<len(lq) else ([] if n==0 else lq)
            m=re.search(r"vmcnt\((\d+)\)",ins.txt)
            if m: n=int(m.group(1)); vq=vq[len(vq)-n:] if n and n<len(vq) else ([] if n==0 else vq)
        if ins.txt.startswith("s_nop"): pos+=int(ins.txt.split()[1])
        if ins.kind=="lds": lq.append((ins.wr|(ins.rd if ins.txt.startswith("ds_write") else set()),t))
        if ins.kind=="smem": assert not lq or True
        if ins.kind=="vmem":
            vq.append((set(ins.wr),ins.tag)); assert len(vq)<=63, ("vmcnt overflow",[x[1] for x in vq])
        hist.append((ins,pos)); pos+=1
        t+= {"mfma32":16,"mfma16":10}.get(ins.kind,ins.cost)
        hist=[(p,pp) for (p,pp) in hist if pos-pp<=13]
    if stats is not None: stats.update(nops=nn,lgkm_waits=nw,n=len(out))
    return out
```

```python
import numpy as np
from asmlib import I
class Ctx:
    def __init__(s, temps): s.out=[]; s.free=list(temps)
class E:
    def __init__(s, c, reg, val, tmp): s.c=c; s.reg=reg; s.val=val.astype(np.int64); s.tmp=tmp
    def _op(s, mn, o, f, rev=False):
        c=s.c; d=s.reg if s.tmp else None
        if isinstance(o,E):
            if d is None and o.tmp: d=o.reg; used=None
            elif s.tmp and o.tmp: used=o.reg
            else: used=None
            if d is None: d=c.free.pop(0)
            c.out.append(I(f"{mn} {d}, {o.reg}, {s.reg}" if rev else f"{mn} {d}, {s.reg}, {o.reg}"))
            if used: c.free.append(used)
            return E(c,d,f(s.val,o.val)&0xffffffff,True)
        if d is None: d=c.free.pop(0)
        txt=o if isinstance(o,str) else (str(o) if -16<=o<=64 else hex(o&0xffffffff))
        v=SV[o] if isinstance(o,str) else o
        c.out.append(I(f"{mn} {d}, {txt}, {s.reg}"))
        return E(c,d,f(s.val,v)&0xffffffff,True)
    def __add__(s,o): return s if (isinstance(o,int) and o==0) else s._op("v_add_u32",o,lambda a,b:a+b)
    def __sub__(s,o): return s._op("v_subrev_u32",o,lambda a,b:a-b,rev=True)
    def __mul__(s,o): return s._op("v_mul_u32_u24",o,lambda a,b:a*b)
    def __and__(s,o): return s._op("v_and_b32",o,lambda a,b:a&b)
    def __or__(s,o): return s._op("v_or_b32",o,lambda a,b:a|b)
    def __xor__(s,o): return s._op("v_xor_b32",o,lambda a,b:a^b)
    def __lshift__(s,o): return s._op("v_lshlrev_b32",o,lambda a,b:a<<b)
    def __rshift__(s,o): return s._op("v_lshrrev_b32",o,lambda a,b:a>>b)
    def keep(s): s.tmp=False; return s
    def drop(s): s.c.free.append(s.reg)
    def to(s, reg):
        last=s.c.out[-1]
        if s.tmp and last.txt.split()[1].rstrip(",")==s.reg:
            p=last.txt.split(" ",2); s.c.out[-1]=I(f"{p[0]} {reg}, {p[2]}"); s.c.free.append(s.reg)
        else: s.c.out.append(I(f"v_mov_b32 {reg}, {s.reg}"))
        return E(s.c,reg,s.val,False)
SV={}
```

```python
import sys, numpy as np
from asmlib import *
from vexpr import Ctx, E, SV
NAME="concat_heads__gqa_block_cached__gqa_block_cached__near_ridge"
OPT=dict(ts=0, LA=200, ntw=1, ntx=0, stop=None, dcost=8)
for a in sys.argv[2:]:
    k,v=a.split("="); OPT[k]=int(v) if v.lstrip("-").isdigit() else v
M32="v_mfma_f32_32x32x16_bf16"; M16="v_mfma_f32_16x16x32_bf16"; M16S="v_mfma_f32_16x16x16_bf16"
K0,K1,V0,V1=0,24576,49152,73728; GB=98304; G=[GB,GB+21504,GB+43008]; SP=162816
OITEM=55296; PART=32<<20; PT=46080
_v=[0]
def va(n,al=1):
    _v[0]=(_v[0]+al-1)//al*al; r=f"v{_v[0]}"; _v[0]+=n; return r
Q=va(48,4); QX=va(24,4); SA=va(16,4); SB=va(16,4); SX=va(4,4); NM=va(16,4); NX=va(4,4)
PA=va(28,4); PB=va(52,4)
dK=[va(1) for _ in range(6)]; dV=[va(1) for _ in range(3)]
rK=[va(1) for _ in range(4)]; rKx=[va(1) for _ in range(2)]; rV=[va(1) for _ in range(2)]; rVx=[va(1) for _ in range(4)]
dW=[va(1) for _ in range(3)]; dX=[va(1) for _ in range(3)]
rW=[va(1) for _ in range(2)]; rWx=[va(1) for _ in range(3)]; rX=[va(1) for _ in range(2)]; rXx=va(1)
dO=dW+dX[:2]; rO=rW[0]; rOx=rWx
vM=va(1); vE=va(1); LA_=va(1); LB_=va(1); LX=va(1); TM=va(1); T2=va(1); T3=va(1); TMX=va(1); VP=va(1); T4=va(1); T5=va(1)
assert _v[0]<=256,_v
O="a0"; OX="a96"; GA="a144"; GX="a240"
BSET=[[off(PB,4*k) for k in range(6)],[off(PB,24+4*k) for k in range(6)],[off(PB,48)]+["a224","a228","a232","a236","a252"]]
sK,sV,sWq,sX,sWo,sWS,sDB="s[4:7]","s[8:11]","s[12:15]","s[16:19]","s[20:23]","s[24:27]","s[28:31]"
CSC=hex(int(np.float32(192**-0.5*np.log2(np.e)).view(np.uint32)))
def srd(pre,r,base,adds,size):
    if adds: pre+= [I(f"s_add_u32 s{r}, s{base}, {adds}"),I(f"s_addc_u32 s{r+1}, s{base+1}, 0"),I(f"s_sub_u32 s{r+2}, {hex(size)}, {adds}")]
    else: pre+=[I(f"s_mov_b32 s{r}, s{base}"),I(f"s_mov_b32 s{r+1}, s{base+1}"),I(f"s_mov_b32 s{r+2}, {hex(size)}")]
    pre.append(I(f"s_mov_b32 s{r+3}, 0x20000"))
TS=[0]
def ts():
    if not OPT["ts"]: return []
    k=TS[0]; TS[0]+=1; assert k<16
    return [I(f"s_memtime s[{64+2*k}:{65+2*k}]")]

def k1():
    pre=[I("s_cmp_ge_u32 s2, 0x100"),I("s_cbranch_scc1 L_end")]+ts()
    for j,o in enumerate(range(0,104,8)):
        if o==80: continue
    pre+=[I("s_load_dwordx8 s[40:47], s[0:1], 0"),I("s_load_dwordx2 s[48:49], s[0:1], 32"),
          I("s_load_dwordx2 s[50:51], s[0:1], 40"),I("s_load_dwordx4 s[52:55], s[0:1], 48"),I("s_load_dwordx4 s[56:59], s[0:1], 64"),
          I("s_load_dwordx2 s[60:61], s[0:1], 88"),I("s_load_dwordx2 s[62:63], s[0:1], 96")]
    pre+=[I(x) for x in ["v_lshrrev_b32 v1, 6, v0","s_and_b32 s97, s2, 3","s_bfe_u32 s96, s2, 0x10002","s_bfe_u32 s98, s2, 0x30003","s_lshr_b32 s99, s2, 6",
          "v_readfirstlane_b32 s32, v1","s_lshl_b32 s100, s97, 2","s_add_u32 s100, s100, s99",
          "s_mul_i32 s37, s98, 5","s_lshr_b32 s37, s37, 1","s_mul_i32 s101, s99, 5","s_add_u32 s37, s37, s101",
          "s_cmp_ge_u32 s37, 20","s_cselect_b32 s101, 20, 0","s_sub_u32 s37, s37, s101","s_lshl_b32 s37, s37, 6",
          "s_mul_i32 s33, s32, 6144","s_mul_i32 s34, s32, 3072","s_lshl_b32 s35, s32, 11","s_mul_i32 s36, s32, 5120",
          "s_waitcnt lgkmcnt(0)","s_cmp_eq_u32 s96, 0","s_cselect_b64 s[40:41], s[40:41], s[50:51]","s_cselect_b64 s[42:43], s[42:43], s[52:53]",
          "s_cselect_b64 s[44:45], s[44:45], s[54:55]","s_cselect_b64 s[46:47], s[46:47], s[56:57]","s_cselect_b64 s[48:49], s[48:49], s[58:59]",
          "s_mul_i32 s101, s100, 384"]]
    srd(pre,12,46,"s101",7864320)
    pre.append(I("s_mul_i32 s101, s98, 184320")); srd(pre,16,40,"s101",1474560)
    pre+=[I("s_lshl_b32 s101, s98, 5"),I("s_add_u32 s101, s101, s100"),I("s_mul_i32 s101, s101, 196608")]
    srd(pre,4,42,"s101",50331648); srd(pre,8,44,"s101",50331648)
    pre.append(I("s_mul_i32 s101, s99, 320")); srd(pre,20,48,"s101",7864320)
    srd(pre,24,62,None,268435456); srd(pre,28,60,None,256)
    pre+=[I(x) for x in ["s_lshl_b32 s101, s32, 4","s_mov_b64 s[42:43], 0xffff","s_lshl_b64 s[42:43], s[42:43], s101"]]
    tid=np.arange(256); w_=tid>>6; l_=tid&63
    SV.update(s32=w_,s33=w_*6144,s35=w_*2048)
    c=Ctx(R(Q,40)); chk=[]
    l=(E(c,"v0",tid,False)&63).keep(); w=E(c,"v1",w_,False)
    wv=(w+0|0).keep()
    c.free=[r for r in c.free if r not in("v0","v1")]
    def div(q,n): return (q*(2731 if n==24 else 3277))>>16
    for j in range(3):
        q=(l+64*j|0).keep(); r=div(q,24).keep(); pc=(q-r*24); sw=((r&2)<<1)|((wv&1)<<1)
        e=(((wv<<3)+r)*12288+((pc^sw)<<4)-1024*j).to(dW[j]); q.drop(); r.drop()
        qq=64*j+l_; rr_=8*w_+qq//24; chk.append((e,rr_*12288+((qq%24)^((((rr_>>1)&1)<<2)|(((rr_>>3)&1)<<1)))*16-1024*j))
    xc=(((l&3)^((l>>4)&3))<<4).keep()
    e=(((wv<<5)+(l>>2))*1280+xc).to(dX[0]); chk.append((e,(32*w_+(l_>>2))*1280+((l_&3)^((l_>>4)&3))*16))
    (e+(16*1280-1024)).to(dX[1]); ((l>>2)*1280+xc+128*1280).to(dX[2]); xc.drop()
    pre1=c.out; c.out=[]
    rr=((l>>2)&3).keep(); cc=(l&3).keep(); h=(l>>5).keep(); g=(l>>4).keep(); Gg=(g&1).keep(); q16=(l&15).keep(); r32=(l&31).keep()
    rr_,cc_,h_,g_,G_=(l_>>2)&3,l_&3,l_>>5,l_>>4,(l_>>4)&1
    for d in range(2):
        e=(((h<<3)+rr)*384+(((((Gg<<1)+(cc&1))+4*d)^(((rr&2)<<1)|(h<<1)))<<4)+((cc>>1)<<3)+GB).to(rW[d])
        chk.append((e,GB+(8*h_+rr_)*384+((4*d+2*G_+(cc_&1))^(4*(rr_>>1)|2*h_))*16+8*(cc_>>1)))
    for e_ in range(3):
        e=(((g<<3)+rr)*384+(((((wv*3+e_)<<1)+(cc>>1))^(((rr&2)<<1)|(Gg<<1)))<<4)+((cc&1)<<3)+GB).to(rWx[e_])
        chk.append((e,GB+(8*g_+rr_)*384+((2*(3*w_+e_)+(cc_>>1))^(4*(rr_>>1)|2*G_))*16+8*(cc_&1)))
    for u in range(2):
        e=((r32<<6)+(((h+2*u|0)^((r32>>2)&3))<<4)+"s35"+(GB+12288)).to(rX[u])
        chk.append((e,GB+12288+2048*w_+(l_&31)*64+((2*u+h_)^(((l_&31)>>2)&3))*16))
    e=((q16<<6)+((g^(q16>>2))<<4)+(GB+20480)).to(rXx); chk.append((e,GB+20480+(l_&15)*64+(g_^((l_&15)>>2))*16))
    gs=rW+rWx+rX+[rXx]; alt={GB:gs,0:R(SA,8),V0:R(SB,8)}
    for b in (0,V0):
        for a,x in zip(gs,alt[b]): c.out.append(I(f"v_subrev_u32 {x}, {hex(GB-b)}, {a}"))
    pre2=c.out; c.out=[]
    for j in range(6):
        r=div(l+64*j|0,24); e=(((l^((r>>1)&7))<<4)+"s33"+(4096 if j>=4 else 0)).to(dK[j])
        chk.append((e,16*(l_^((((64*j+l_)//24)>>1)&7))+6144*w_+(4096 if j>=4 else 0)))
    for j in range(3):
        r=div(l+64*j|0,24).keep(); e=(((l^(((r&2)<<1)|((r&4)>>1)))<<4)+"s33").to(dV[j]); r.drop()
        r_=(64*j+l_)//24; chk.append((e,16*(l_^((((r_>>1)&1)<<2)|(((r_>>2)&1)<<1)))+6144*w_))
    for m in range(4):
        e=(r32*384+(((h+2*m|0)^((r32>>1)&7))<<4)).to(rK[m]); chk.append((e,(l_&31)*384+((2*m+h_)^(((l_&31)>>1)&7))*16))
    for t in range(2):
        e=(q16*384+(((g+4*t|0)^(q16>>1))<<4)+"s33").to(rKx[t]); chk.append((e,(16*w_+(l_&15))*384+((4*t+g_)^((l_&15)>>1))*16))
    for d in range(2):
        e=(((h<<2)+rr)*384+(((((Gg<<1)+(cc>>1))+4*d)^(((rr&2)<<1)|(h<<1)))<<4)+((cc&1)<<3)+V0).to(rV[d])
        chk.append((e,V0+(4*h_+rr_)*384+((4*d+2*G_+(cc_>>1))^(4*(rr_>>1)|2*h_))*16+8*(cc_&1)))
    for k in range(4):
        e=(((g<<2)+rr)*384+((((cc>>1)+2*k)^(((rr&2)<<1)|(Gg<<1)))<<4)+((cc&1)<<3)+"s33"+V0).to(rVx[k])
        chk.append((e,V0+(16*w_+4*g_+rr_)*384+((2*k+(cc_>>1))^(4*(rr_>>1)|2*G_))*16+8*(cc_&1)))
    (wv*12288+(l<<4)).to(vM); ((l<<4)+49152).to(vE)
    pre3=c.out
    for e,ref in chk: assert (e.val==(ref&0xffffffff)).all(), e.reg
    pre3+=[I(x) for x in ["s_mov_b64 s[44:45], 1","s_lshl_b32 s101, s96, 3","s_add_u32 s101, s101, s98","s_lshl_b32 s57, s101, 2","s_add_u32 s57, s57, s97","s_lshl_b32 s57, s57, 2",
        "s_lshl_b32 s58, s97, 4","s_add_u32 s58, s58, s101","s_lshl_b32 s58, s58, 2","s_add_u32 s58, s58, s99",f"s_mul_i32 s58, s58, {PT}",f"s_add_u32 s58, s58, {hex(PART)}",
        "s_lshl_b32 s101, s101, 5"]]
    for i in range(4):
        pre3+=[I(x) for x in [f"s_add_u32 s40, s99, {i}","s_and_b32 s40, s40, 3","s_lshl_b32 s41, s97, 2","s_add_u32 s40, s40, s41",f"s_mul_i32 s{48+i}, s40, {192*1280}",
               "s_add_u32 s40, s40, s101",f"s_mul_i32 s{52+i}, s40, {OITEM}"]]
    for e_ in range(3):
        pre3+=[I(x) for x in ["s_mul_i32 s40, s32, 3",f"s_add_u32 s40, s40, {e_}","s_and_b32 s41, s40, 1","s_lshr_b32 s40, s40, 1","s_lshl_b32 s40, s40, 10","s_lshl_b32 s41, s41, 3",f"s_add_u32 s{60+e_}, s40, s41"]]
    HO=R(off(PB,24),9)
    def wo_regs():
        c=Ctx(R(QX,24)); ck=[]; dO=HO[:5]; rO=HO[5]; rOx=HO[6:9]
        l=((E(c,vE,16*l_+49152,False)>>4)&63).keep(); wv=((l&0)+"s32").keep()
        for j in range(5):
            q=(l+64*j|0).keep(); r=div(q,20).keep(); pc=q-r*20
            e=(((wv<<4)+r)*1280+((pc^((r&4)>>1))<<4)-1024*(j%4)).to(dO[j]); q.drop(); r.drop()
            qq=64*j+l_; r_=qq//20; ck.append((e,(16*w_+r_)*1280+((qq%20)^(((r_>>2)&1)<<1))*16-1024*(j%4)))
        rr=((l>>2)&3).keep(); h=(l>>5).keep(); g=(l>>4).keep(); Gg=(g&1).keep()
        e=(((h<<2)+rr)*320+((((Gg<<1)+(l&1))^(h<<1))<<4)+((l&2)<<2)+GB).to(rO); ck.append((e,GB+(4*h_+rr_)*320+((2*G_+(cc_&1))^(2*h_))*16+8*(cc_>>1)))
        base=(((g<<2)+rr)*320+((l&1)<<3)+GB).keep(); lo=((l>>1)&1).keep()
        for e_ in range(3):
            blk=wv+4*e_ if e_<2 else (wv&1)+8
            e=(base+((((blk<<1)+lo)^(Gg<<1))<<4)).to(rOx[e_]); b_=w_+4*e_ if e_<2 else (w_&1)+8
            ck.append((e,GB+(4*g_+rr_)*320+((2*b_+(cc_>>1))^(2*G_))*16+8*(cc_&1)))
        for e,ref in ck: assert (e.val==(ref&0xffffffff)).all(), e.reg
        return c.out
    def D(txt,tag): i=I(txt,tag); i.cost=OPT["dcost"]; return i
    def m0(s,c_): return I(f"s_add_u32 m0, {s}, {hex(c_)}")
    ntw=" nt" if OPT["ntw"] else ""; ntx=" nt" if OPT["ntx"] else ""
    def dmaT(t):
        so=(t//16)*3145728+((t%16)//2)*24576; slot=[K0,V0,K1,V1][t%4]; tg=("T",t); o=[]
        for j in range(6):
            p=[]
            if t%2==0:
                if j in(0,4): p.append(m0("s33",slot+(4096 if j else 0)))
                if j==0: p.append(I(f"s_mov_b32 s39, {hex(so)}"))
                p.append(D(f"buffer_load_dwordx4 {dK[j]}, {sK}, s39 offen offset:{1024*(j%4)} nt lds",tg))
            else:
                if j in(0,3): p+=[m0("s33",slot+1024*j),I(f"s_mov_b32 s39, {hex(so+1024*j)}")]
                p.append(D(f"buffer_load_dwordx4 {dV[j%3]}, {sV}, s39 offen offset:{1024*(j%3)} nt lds",tg))
            o.append(p)
        return o
    def dmaQ(rnd,s,slot):
        tg=("GQ",rnd,s); o=[]
        p=[m0("s34",slot)]
        if not(rnd==0 and s==0): p+=[I("s_add_u32 s37, s37, 64"),I("s_cmp_eq_u32 s37, 0x500"),I("s_cselect_b32 s37, 0, s37")]
        p+=[I("s_mul_i32 s38, s37, 6144")]+([I("s_add_u32 s38, s38, 6144")] if rnd else [])
        for j in range(3):
            o.append(p+[D(f"buffer_load_dwordx4 {dW[j]}, {sWq}, s38 offen offset:{1024*j}{ntw} lds",tg)]); p=[]
        o.append([m0("s35",slot+12288),D(f"buffer_load_dwordx4 {dX[0]}, {sX}, s37 offen{ntx} lds",tg)])
        o.append([D(f"buffer_load_dwordx4 {dX[1]}, {sX}, s37 offen offset:1024{ntx} lds",tg)])
        o.append([I(f"s_mov_b32 m0, {hex(slot+20480)}"),I("s_mov_b64 exec, s[42:43]"),D(f"buffer_load_dwordx4 {dX[2]}, {sX}, s37 offen{ntx} lds",tg),I("s_mov_b64 exec, -1")])
        return o
    def dmaO(k):
        slot=G[(k+1)%3]; tg=("GO",k); o=[]; i=(k%12)//3
        for j in range(5):
            p=[]
            if j in(0,4): p.append(m0("s36",slot+(4096 if j else 0)))
            if j==0: p.append(I(f"s_add_u32 s38, s{48+i}, {hex((k//12)*16*192*1280+(k%3)*64*1280)}"))
            o.append(p+[D(f"buffer_load_dwordx4 {dO[j]}, {sWo}, s38 offen offset:{1024*(j%4)}{ntw} lds",tg)])
        return o
    def ldB(k):
        i=(k%12)//3; b=BSET[k%3]; base=(k//12)*16*OITEM; o=[]
        for u in range(6):
            p=[]
            if u==0: p.append(I(f"s_add_u32 s59, s{52+i}, {hex(base+(k%3)*4096)}"))
            if u==4: p.append(I(f"s_add_u32 s59, s{52+i}, {hex(base+(k%3)*2048)}"))
            o.append(p+[D(f"buffer_load_dwordx4 {T(b[u],4)}, {vM if u<4 else vE}, {sWS}, s59 offen offset:{1024*(u%4)} sc1",("B",k))])
        return o
    def f128(a,imm,pool="A"): return Frag(4,lambda r:[I(f"ds_read_b128 {T(r,4)}, {a} offset:{imm}")],pool)
    def ftr(a0,i0,a1,i1): return Frag(4,lambda r:[I(f"ds_read_b64_tr_b16 {T(r,2)}, {a0} offset:{i0}"),I(f"ds_read_b64_tr_b16 {T(off(r,2),2)}, {a1} offset:{i1}")])
    def mQK(it,t,c0):
        sl=24576*(it%2); S=[SA,SB][t]
        return [M(M32,S,f128(rK[ks%4],sl+t*12288+(ks>>2)*128),off(Q,4*ks),c0 if ks==0 else None) for ks in range(12)]
    def mQKx(it,c0): return [M(M16,SX,f128(rKx[t&1],24576*(it%2)+(t>>1)*128),off(QX,4*t),c0 if t==0 else None) for t in range(6)]
    def mPV(it,t,dbm=False):
        sl=24576*(it%2); S=[SA,SB][t]; o=[]
        for u,db in (sorted([(u,db) for u in range(2) for db in range(6)],key=lambda x:(x[1],x[0])) if dbm else [(u,db) for u in range(2) for db in range(6)]):
            im=sl+(db>>1)*128+(32*t+16*u)*384
            o.append(M(M32,off(O,16*db),ftr(rV[db&1],im,rV[db&1],im+8*384),off(S,8*u),"0" if(it==0 and t==0 and u==0) else None))
        return o
    def mPVx(it):
        o=[]
        for b2 in range(6):
            b=2*b2; im=24576*(it%2)+(b>>2)*128; f=ftr(rVx[b&3],im,rVx[(b+1)&3],im)
            for e_ in range(2): o.append(M(M16S,off(OX,4*(b+e_)),(f,2*e_),SX,"0" if it==0 else None,na=2))
        return o
    def mGQ(s,slot):
        b=GB if slot>=GB else V0 if slot>=V0 else 0; a=alt[b]; sl=slot-b
        xf=[f128(a[5+u],sl,"B") for u in range(2)]; xe=f128(a[7],sl,"B")
        mn=[[M(M32,off(GA,16*db),ftr(a[db&1],sl+(db>>1)*128+16*u*384,a[db&1],sl+(db>>1)*128+(16*u+4)*384),xf[u],"0" if(s==0 and u==0) else None) for db in range(6)] for u in range(2)]
        ex=[M(M16,off(GX,4*e_),ftr(a[2+e_],sl,a[2+e_],sl+4*384),xe,"0" if s==0 else None) for e_ in range(3)]
        return mn,ex
    def mGO(k):
        sl=G[(k+1)%3]-GB; b=BSET[k%3]
        mn=[[M(M32,off(GA,16*cb),ftr(rO,sl+64*cb+16*u*320,rO,sl+64*cb+(16*u+8)*320),b[u],"0" if(k==0 and u==0) else None) for cb in range(5)] for u in range(4)]
        ex=[M(M16,off(GX,4*e_),ftr(rOx[e_],sl+32*t*320,rOx[e_],sl+(32*t+16)*320),b[4+t],"0" if(k==0 and t==0) else None) for t in range(2) for e_ in range(3)]
        return mn,ex
    def flat(me):
        mn,ex=me; o=[m for r in mn for m in r]; n=len(o); st=n//len(ex); res=[]
        for i,m in enumerate(o):
            res.append(m)
            if i%st==st-1 and ex[i//st:i//st+1]: res.append(ex[i//st])
        for x in ex:
            if x not in res: res.append(x)
        return res
    def ilv(a,b):
        o=[]
        for i in range(max(len(a),len(b))): o+=a[i:i+1]+b[i:i+1]
        return o
    spine=[]; rs=[]; fills=[]; tagf={}; stubs=[]
    def half(ms,waits=(),deps=(),dma=(),lg=False,bar=True,extra=(),dlo=1):
        st=len(spine)
        if bar:
            dp=list(deps)
            for t in waits: dp+=tagf.get(t,[])
            rs.append(([WaitVM(waits)]+([I("s_waitcnt lgkmcnt(0)")] if lg else [])+[I("s_barrier")]+list(extra),st,dp))
        for m in ms:
            m.i=len(spine); spine.append(m)
            for f in m.fr:
                if not getattr(f,"q",0): f.q=1; rs.append((f,m.i))
        en=len(spine); n=len(dma)
        if n:
            span=max(en-st-dlo-3,1)
            for k,p in enumerate(dma):
                lo=min(st+dlo+k*span//n,en-2); f=Fill(p,lo,min(lo+3,en-1),"dma"); fills.append(f)
                for x in p:
                    if x.tag is not None and x.kind=="vmem": tagf.setdefault(x.tag,[]).append(f)
        return st,en
    def F(txts,lo,hi,ch):
        f=Fill([I(t) if isinstance(t,str) else t for t in (txts if isinstance(txts,list) else [txts])],lo,hi,ch); fills.append(f); return f
    def maxch(S,n,tm):
        o=[f"v_max3_f32 {tm}, {S}, {off(S,1)}, {off(S,2)}"]
        for k in range(3,n-1,2): o.append(f"v_max3_f32 {tm}, {tm}, {off(S,k)}, {off(S,k+1)}")
        o.append(f"v_max_f32 {tm}, {tm}, {off(S,n-1)}"); return o
    def red(x,t,op,n16):
        o=[f"v_mov_b32 {t}, {x}","s_nop 0",f"v_permlane32_swap_b32 {x}, {t}",f"{op} {x}, {x}, {t}"]
        if n16: o+=[f"v_mov_b32 {t}, {x}","s_nop 0",f"v_permlane16_swap_b32 {x}, {t}",f"{op} {x}, {x}, {t}"]
        return o
    def check(S,n,tm,sub,lo,hi,ch):
        for x in maxch(S,n,tm): F(x,lo,hi,ch)
        k=len(stubs); stubs.append((k,sub))
        F([f"v_cmp_lt_f32 vcc, 0x41000000, {tm}",f"s_cbranch_vccnz L_fb{k}",Label(f"L_rt{k}")],lo,hi,ch)
    def init(S,n,tm,t,N,lo,hi,hi2,ch):
        for x in maxch(S,n,tm): F(x,lo,hi,ch)
        F(red(tm,t,"v_max_f32",n==4),lo,hi,ch)
        for k in range(n): F(f"v_sub_f32 {off(N,k)}, 0, {tm}",lo,hi,ch)
        for k in range(n): F(f"v_sub_f32 {off(S,k)}, {off(S,k)}, {tm}",lo,hi2,ch)
    def smx(S,n,lo,his,ch,first,la,lb):
        for k in range(0,n,2):
            hi=his[k//8]; a,b=off(S,k),off(S,k+1)
            F([f"v_exp_f32 {a}, {a}",f"v_exp_f32 {b}, {b}"],lo,hi,ch)
            z=first and k==0
            F([f"v_add_f32 {la}, {'0' if z else la}, {a}",f"v_add_f32 {lb}, {'0' if (z and la!=lb) else lb}, {b}",f"v_cvt_pk_bf16_f32 {off(S,(k//8)*8+(k%8)//2)}, {a}, {b}"],lo,hi,ch)
    tg=[0]
    def cvt8(src,n,mul,dst,lo,hi,ch):
        t=off(SA,8*(tg[0]%4)) if ch!="ep" else [SB,off(SB,8),NM,off(NM,8)][tg[0]%4]; tg[0]+=1
        for k in range(0,n,4): F([f"v_accvgpr_read_b32 {off(t,k+j)}, {off(src,k+j)}" for j in range(4)],lo,hi,ch)
        if mul:
            for k in range(0,n,4): F([f"v_mul_f32 {off(t,k+j)}, {mul}, {off(t,k+j)}" for j in range(4)],lo,hi,ch)
        d=dst or t
        F([f"v_cvt_pk_bf16_f32 {off(d,j)}, {off(t,2*j)}, {off(t,2*j+1)}" for j in range(n//2)],lo,hi,ch)
        return d
    def qlast(rnd,waits,dma,deps=()):
        (a,ax),(b,bx)=mGQ(18,G[1]),mGQ(19,G[2]); ms=ilv(ax,a[0][:3])+ilv(bx,a[0][3:])
        for db in range(6): ms+=[a[1][db],b[0][db],b[1][db]]
        st,en=half(ms,waits,deps,dma)
        lo=bx[2].i+1; ws=[]
        F([f"v_lshrrev_b32 {T4}, 4, {vE}",f"v_and_b32 {T5}, 15, {T4}",f"v_mul_u32_u24 {T5}, 0x190, {T5}",f"v_bfe_u32 {T4}, {T4}, 4, 2"],st,en,"ep")
        F([f"v_lshl_add_u32 {T3}, {T4}, 4, {T5}",f"v_lshl_add_u32 {T4}, {T4}, 3, {T5}","s_mul_i32 s40, s32, 96",f"v_add_u32 {T4}, s40, {T4}",f"v_add_u32 {T3}, {hex(G[0])}, {T3}",f"v_add_u32 {T4}, {hex(G[0])}, {T4}"],st,en,"ep")
        for e_ in range(3):
            d=cvt8(off(GX,4*e_),4,CSC,None,lo,en,"ep"); ws.append(F(f"ds_write_b64 {T4}, {T(d,2)} offset:{32*e_}",lo,en,"ep"))
        for db in range(6):
            for u in range(2): cvt8(off(GA,16*db+8*u),8,CSC,off(Q,8*db+4*u),b[1][db].i+1,en+2*db+u,"ep")
        return ws
    def att(rnd,gl,dm,ws,wt):
        for it in range(8):
            n=2*it; t0=16*rnd+n; g=gl.get(n,[])
            a=mQK(it,0,"0" if it==0 else NM); b=mQK(it,1,NM); x=mQKx(it,"0" if it==0 else NX)
            ms=a+g[:3]+b+ilv(x,g[3:9])+g[9:] if g else a+x+b
            st,en=half(ms,[("T",t0)]+wt.get(n,[]),ws if it==0 else (),dm.get(n,[]),lg=it==0,extra=ts() if it in(0,4) else ())
            if it==0:
                for t in range(6): F(f"ds_read_b128 {T(off(QX,4*t),4)}, {T3} offset:{64*t}",st,x[0].i-2,"qx")
            pa,pb,px=mPV(it,0),mPV(it,1,it==7),mPVx(it); g=gl.get(n+1,[])
            st2,en2=half(pa+g+pb+px if it<7 else pa+g+px+pb,[("T",t0+1)]+wt.get(n+1,[]),(),dm.get(n+1,[]))
            if it==0:
                init(SA,16,TM,T2,NM,a[-1].i+1,b[0].i,pa[0].i,"sm"); init(SX,4,TMX,T5,NX,x[-1].i+1,px[0].i,px[0].i,"sx")
            else:
                check(SA,16,TM,"L_FA",a[-1].i+1,b[0].i,"sm"); check(SX,4,TMX,"L_FX",x[-1].i+1,px[0].i,"sx")
            smx(SA,16,a[-1].i+1,[pa[0].i,pa[6].i],"sm",it==0,LA_,LB_)
            check(SB,16,TM,"L_FB",b[-1].i+1,pa[0].i,"sm")
            smx(SB,16,b[-1].i+1,[pb[0].i,pb[6 if it<7 else 1].i],"sm",False,LA_,LB_)
            smx(SX,4,x[-1].i+1,[px[0].i],"sx",it==0,LX,LX)
        lo=px[0].i
        F(red(LX,T5,"v_add_f32",True),lo,en2,"sx")
        F([f"v_bfe_u32 {T4}, {vE}, 4, 4",f"v_lshlrev_b32 {T4}, 3, {T4}",f"v_add_u32 {T4}, {hex(SP)}, {T4}","s_lshl_b32 s40, s32, 7",f"v_add_u32 {T5}, s40, {T4}",f"v_mov_b32 {off(NX,1)}, {LX}"],lo,en2,"sx")
        wml=F(f"ds_write_b64 {T5}, {T(NX,2)}",lo,en2,"sx")
        F([f"v_add_f32 {LA_}, {LA_}, {LB_}"]+red(LA_,T2,"v_add_f32",False)+[f"v_rcp_f32 {LA_}, {LA_}"],pb[1].i,en2,"sm")
        return wml,pb
    def epi(rnd,wml,pb,g3,dm3,wt3):
        ob=rnd*16*OITEM; st0,en0=half(g3[0],wt3[0],[wml],dm3[0],lg=True,extra=ts())
        m4=R(QX,8);
        F([f"ds_read_b64 {T(m4[2*k],2)}, {T4} offset:{128*k}" for k in range(4)],st0-1,en0,"ex")
        F([f"v_min3_f32 {T5}, {m4[0]}, {m4[2]}, {m4[4]}",f"v_min_f32 {T5}, {T5}, {m4[6]}"]+[f"v_sub_f32 {m4[2*k]}, {T5}, {m4[2*k]}" for k in range(4)]+[f"v_sub_f32 {T5}, {T5}, {NX}"],st0,en0,"ex")
        F([f"v_exp_f32 {m4[2*k]}, {m4[2*k]}" for k in range(4)]+[f"v_exp_f32 {T5}, {T5}"],st0,en0,"ex")
        F([f"v_mul_f32 {LX}, {m4[0]}, {m4[1]}"]+[f"v_fmac_f32 {LX}, {m4[2*k]}, {m4[2*k+1]}" for k in range(1,4)]+[f"v_rcp_f32 {LX}, {LX}",f"v_lshrrev_b32 {T4}, 1, {vE}",f"v_mul_f32 {LX}, {LX}, {T5}",
           f"v_add_u32 {T4}, {hex(V1-24576)}, {T4}",f"v_add_u32 {T5}, s33, {T4}","s_mul_i32 s40, s32, 1536",f"v_add_u32 {T4}, s40, {T4}"],st0,en0,"ex")
        wr=[]
        for b in range(12):
            d=cvt8(off(OX,4*b),4,LX,None,st0,en0,"ex"); wr.append(F(f"ds_write_b64 {T5}, {T(d,2)} offset:{512*b}",st0,en0,"ex"))
        st1,en1=half(g3[1],wt3[1],wr,dm3[1],lg=True)
        sf=[]; rds=[]
        for e_ in range(3):
            rds.append(F([f"ds_read_b64 {T(m4[2*k],2)}, {T4} offset:{6144*k+512*e_}" for k in range(4)],st1-1,en1-6,"ex"))
            a=R(off(QX,8),8)
            for k in range(4):
                for j in range(2):
                    x,y=(a[2*j],a[2*j+1]) if k==0 else (a[4],a[5])
                    F([f"v_lshlrev_b32 {x}, 16, {m4[2*k+j]}",f"v_and_b32 {y}, 0xffff0000, {m4[2*k+j]}"]+([f"v_add_f32 {a[2*j]}, {a[2*j]}, {x}",f"v_add_f32 {a[2*j+1]}, {a[2*j+1]}, {y}"] if k else []),st1,en1-4,"ex")
            d=off(QX,16+2*e_)
            sf.append(F([f"v_cvt_pk_bf16_f32 {d}, {a[0]}, {a[1]}",f"v_cvt_pk_bf16_f32 {off(d,1)}, {a[2]}, {a[3]}",f"s_add_u32 s40, s52, s{60+e_}",f"s_add_u32 s40, s40, {hex(ob)}",
               I(f"buffer_store_dwordx2 {T(d,2)}, {vE}, {sWS}, s40 offen sc1",("O",rnd))],st1,en1-2,"ex"))
        st2,en2=half(g3[2],wt3[2],rds,dm3[2])
        for s in range(12):
            lo=max(pb[(s//2)*2+1].i+1,0); hi=en2-2
            if s>=2: lo=max(lo,wr[-1].lo)
            d=cvt8(off(O,8*s),8,LA_,None,lo,hi,"ex" if s>=NEARLY else "e0")
            sf.append(F([f"s_add_u32 s41, s52, {hex(ob+(s//4)*4096)}",I(f"buffer_store_dwordx4 {T(d,4)}, {vM}, {sWS}, s41 offen offset:{1024*(s%4)} sc1",("O",rnd))],lo,hi,"ex" if s>=NEARLY else "e0"))
        return sf,st2,en2
    NEARLY=0
    def publish(rnd,lo,hi,ch):
        return F([WaitVM([("O",rnd)]),f"v_mov_b32 {T2}, {hex(1<<(16*rnd))}","s_mov_b64 exec, s[44:45]",I(f"buffer_atomic_add {T2}, off, {sDB}, s57 sc1",("A",rnd)),"s_mov_b64 exec, -1"],lo,hi,ch)
    def poll(rnd,lo,lo2,hi):
        F(I(f"buffer_load_dword {VP}, off, {sDB}, s57 sc1",("P",rnd)),lo,lo+1,"dma")
        F([f"v_readfirstlane_b32 s40, {VP}",f"s_bfe_u32 s40, s40, {hex(0x100000|16*rnd)}","s_cmp_lt_u32 s40, 16",f"s_cbranch_scc1 L_sp{rnd}",Label(f"L_pr{rnd}")],lo2,hi,"dma")
    hs=[G[0],G[1],G[2],K0,K1,V0,V1]; slot={s:hs[s%7] for s in range(17)}; slot.update({17:G[0],18:G[1],19:G[2]})
    prog=pre+pre1
    for s in range(7):
        for p in dmaQ(0,s,slot[s]): prog+=p
        tagf[("GQ",0,s)]=[]
        if s==1: prog+=pre2
    prog+=pre3+wo_regs()
    for s in range(18):
        if 1<=s<=10: d=dmaQ(0,s+6,slot[s+6])
        elif 11<=s<=14: d=dmaT([0,2,1,3][s-11])
        elif s>=15: d=dmaQ(0,s+2,slot[s+2])
        else: d=[]
        half(flat(mGQ(s,slot[s])),[("GQ",0,s)],(),d,extra=ts() if s in(0,10) else ())
    ws=qlast(0,[("GQ",0,18),("GQ",0,19)],[])
    gl={n:flat(mGQ(n-1,G[n%3])) for n in range(1,16)}
    dm={n:(dmaQ(1,0,G[1]) if n==0 else [])+dmaQ(1,n+1,G[(n+2)%3])+(dmaT(n+3) if n>=1 else []) for n in range(16)}
    wml,pb=att(0,gl,dm,ws,{n:[("GQ",1,n-1)] for n in range(1,16)})
    sf,st2,en2=epi(0,wml,pb,[flat(mGQ(15+k,G[(16+k)%3])) for k in range(3)],[dmaQ(1,17,G[0]),dmaQ(1,18,G[1]),dmaQ(1,19,G[2])+dmaT(19)],[[("GQ",1,15+k)] for k in range(3)])
    ws=qlast(1,[("GQ",1,18),("GQ",1,19)],[],sf)
    en=len(spine)
    publish(0,en-8,en-4,"ep")
    F([f"v_mov_b32 {a}, {b}" for a,b in zip(dO,HO[:5])],en-20,en-2,"dma")
    use={2:0,4:1,6:2,8:3,9:4,10:5,12:6,13:7,14:8}
    gl={n:flat(mGO(k)) for n,k in use.items()}
    dm={n:[] for n in range(16)}; dm[0]=dmaO(0)+dmaO(1); dm[1]=dmaO(2)+ldB(0)+ldB(1)+ldB(2)
    for n,k in use.items(): dm[n+1]=ldB(k+3)+dmaO(k+3)
    for n in range(1,13): dm[n]+=dmaT(16+n+3)
    n0=len(fills); i0=len(spine)
    F([f"v_mov_b32 {a}, {b}" for a,b in zip([rO]+rOx,HO[5:])],i0-1,i0+20,"mv")
    poll(0,i0,i0+29,i0+31)
    pl=fills[-2:]; del fills[-2:]
    fills.append(pl[0]); nb=len(fills)
    wml,pb=att(1,gl,dm,ws,{n:[("GO",k)] for n,k in use.items()})
    j=[i for i in range(nb,len(fills)) if fills[i].chain=="dma"][len(dm[0])]; fills.insert(j,pl[1])
    sf,st2,en2=epi(1,wml,pb,[flat(mGO(9+k)) for k in range(3)],[[],dmaO(12),dmaO(13)],[[("GO",9+k)] for k in range(3)])
    pub=publish(1,en2-2,en2,"ex")
    for k in range(12,24):
        mn,ex=mGO(k)
        ms=flat((mn,ex)) if k<23 else ilv(ex,mn[0]+[mn[1][0]])+[mn[2][0],mn[3][0]]+[mn[u][cb] for cb in range(1,5) for u in range(1,4)]
        if k==12:
            x=[i for p in ldB(12)+ldB(13) for i in p]+ts()
            st,en=half(ms,[("GO",k),("O",1)],[pub],ldB(14)+dmaO(14),extra=x); poll(1,en-3,en,en+1); pl=fills.pop()
        else:
            if k==13: fills.append(pl)
            st,en=half(ms,[("GO",k)],(),(ldB(k+2)+dmaO(k+2)) if k+2<24 else [])
    F(["s_lshl_b32 s40, s32, 11","s_mul_i32 s41, s32, 12288",f"v_subrev_u32 {T4}, s40, {vM}",f"v_subrev_u32 {T5}, s41, {vM}",f"v_lshrrev_b32 {T5}, 1, {T5}","s_lshl_b32 s40, s32, 9","s_add_u32 s60, s58, s40",
       "s_and_b32 s40, s40, 0x200","s_add_u32 s62, s58, s40"],st,en,"fin")
    for e_ in range(3):
        d=cvt8(off(GX,4*e_),4,None,None,ex[-1].i+1,en,"fin")
        F([f"s_add_u32 s40, {'s62' if e_==2 else 's60'}, {hex(40960+2048*e_)}",f"buffer_store_dwordx2 {T(d,2)}, {T5}, {sWS}, s40 offen"],ex[-1].i+1,en,"fin")
    for s in range(10):
        lo=min(mn[3][s//2].i+1,en-1); d=cvt8(off(GA,8*s),8,None,None,lo,en,"fin")
        F([f"s_add_u32 s40, s58, {hex((s//4)*4096)}",f"buffer_store_dwordx4 {T(d,4)}, {T4}, {sWS}, s40 offen offset:{1024*(s%4)}"],lo,en,"fin")
    rs.sort(key=lambda x:x[1])
    prog+=schedule(spine,rs,fills,{"A":Pool(PA,7),"B":Pool(PB,6)},LA=OPT["LA"])
    prog+=ts()
    if OPT["ts"]:
        prog+=[I("s_waitcnt lgkmcnt(0)"),I("s_lshl_b32 s40, s2, 8"),I(f"s_add_u32 s40, s40, {hex(64<<20)}"),I("s_lshl_b32 s41, s32, 6"),I("s_add_u32 s40, s40, s41"),I("s_mov_b64 exec, 1")]
        for k in range(TS[0]): prog+=[I(f"v_mov_b32 {T2}, s{64+2*k}"),I(f"buffer_store_dword {T2}, off, {sWS}, s40 offset:{4*k}")]
    prog+=[Label("L_end"),I("s_endpgm")]
    st={}; out=finalize(prog,stats=st); print("k1",st,"mfma",len(spine),"cyc",sum(m.dur for m in spine),file=sys.stderr)
    txt=[x.txt for x in out]
    for k,sub in stubs: txt+=[f"L_fb{k}:",f"s_call_b64 s[46:47], {sub}",f"s_branch L_rt{k}"]
    for nm,S,N,n,tm,t,acc,na,ls in (("L_FA",SA,NM,16,TM,T2,O,96,[LA_,LB_]),("L_FB",SB,NM,16,TM,T2,O,96,[LA_,LB_]),("L_FX",SX,NX,4,TMX,T5,OX,48,[LX])):
        p=["s_nop 15","s_nop 15"]+red(tm,t,"v_max_f32",n==4)+[f"v_max_f32 {tm}, 0, {tm}"]
        p+=[f"v_sub_f32 {off(S,k)}, {off(S,k)}, {tm}" for k in range(n)]+[f"v_sub_f32 {off(N,k)}, {off(N,k)}, {tm}" for k in range(n)]
        p+=[f"v_exp_f32 {tm}, -{tm}","s_nop 1"]+[f"v_mul_f32 {x}, {x}, {tm}" for x in ls]
        for k in range(na): p+=[f"v_accvgpr_read_b32 {t}, {off(acc,k)}",f"v_mul_f32 {t}, {t}, {tm}",f"v_accvgpr_write_b32 {off(acc,k)}, {t}"]
        if nm=="L_FB":
            for r in R(SA,4)+R(off(SA,8),4):
                p+=[f"v_lshlrev_b32 {t}, 16, {r}",f"v_and_b32 {r}, 0xffff0000, {r}",f"v_mul_f32 {t}, {t}, {tm}",f"v_mul_f32 {r}, {r}, {tm}",f"v_cvt_pk_bf16_f32 {r}, {t}, {r}"]
        txt+=[nm+":"]+[x.txt for x in finalize([I(x) for x in p])]+["s_nop 3","s_setpc_b64 s[46:47]"]
    for r in range(2):
        txt+=[f"L_sp{r}:","s_sleep 2",f"buffer_load_dword {VP}, off, {sDB}, s57 sc1","s_waitcnt vmcnt(0)",f"v_readfirstlane_b32 s40, {VP}","s_nop 0",f"s_bfe_u32 s40, s40, {hex(0x100000|16*r)}","s_cmp_lt_u32 s40, 16",f"s_cbranch_scc1 L_sp{r}",f"s_branch L_pr{r}"]
    return txt

def k2():
    p=["s_cmp_ge_u32 s2, 0x100","s_cbranch_scc1 L_end2","s_load_dwordx2 s[4:5], s[0:1], 96","s_load_dwordx2 s[8:9], s[0:1], 80",
       "v_lshrrev_b32 v1, 6, v0","v_and_b32 v0, 63, v0","s_lshr_b32 s13, s2, 2","s_and_b32 s14, s2, 3","v_readfirstlane_b32 s12, v1",
       f"s_mul_i32 s15, s13, {PT}",f"s_add_u32 s15, s15, {hex(PART)}","s_mul_i32 s16, s14, 10240","s_lshl_b32 s17, s12, 11","s_add_u32 s16, s16, s17","s_add_u32 s16, s16, s15",
       "v_lshlrev_b32 v2, 4, v0","s_mov_b32 s6, 0x10000000","s_mov_b32 s7, 0x20000","s_mov_b32 s10, 2949120","s_mov_b32 s11, 0x20000","s_waitcnt lgkmcnt(0)"]
    for ks in range(4):
        p+=[f"buffer_load_dwordx4 v[{8+8*ks}:{11+8*ks}], v2, s[4:7], s16 offen",f"buffer_load_dwordx4 v[{12+8*ks}:{15+8*ks}], v2, s[4:7], s16 offen offset:1024",f"s_add_u32 s16, s16, {64*PT}"]
    p+=["s_and_b32 s18, s14, 1","s_mul_i32 s18, s18, 5","s_add_u32 s18, s18, s12","s_lshl_b32 s19, s18, 9","s_add_u32 s19, s19, s15","s_add_u32 s19, s19, 40960","v_lshlrev_b32 v3, 3, v0"]
    for ks in range(4): p+=[f"buffer_load_dwordx2 v[{40+2*ks}:{41+2*ks}], v3, s[4:7], s19 offen",f"s_add_u32 s19, s19, {64*PT}"]
    p+=["s_bfe_u32 s20, s13, 0x30002","s_mul_i32 s20, s20, 368640","s_lshr_b32 s21, s13, 5","s_mul_i32 s21, s21, 1280","s_add_u32 s20, s20, s21","s_and_b32 s21, s13, 3","s_mul_i32 s21, s21, 320","s_add_u32 s20, s20, s21",
        "s_mul_i32 s21, s14, 81920","s_add_u32 s21, s21, s20","s_lshl_b32 s22, s12, 6","s_add_u32 s21, s21, s22",
        "v_and_b32 v4, 31, v0","v_mul_u32_u24 v4, 0xa00, v4","v_lshrrev_b32 v5, 5, v0","v_lshl_add_u32 v4, v5, 4, v4",
        "s_lshl_b32 s22, s18, 5","s_add_u32 s22, s22, s20","s_add_u32 s22, s22, 327680",
        "v_and_b32 v5, 15, v0","v_mul_u32_u24 v5, 0xa00, v5","v_lshrrev_b32 v6, 4, v0","v_lshl_add_u32 v5, v6, 3, v5"]
    def summ(b,st,j):
        o=[f"v_lshlrev_b32 v6, 16, v{b+j}",f"v_and_b32 v7, 0xffff0000, v{b+j}"]
        for ks in range(1,4): r=b+st*ks+j; o+=[f"v_lshlrev_b32 v1, 16, v{r}",f"v_and_b32 v{r}, 0xffff0000, v{r}","v_add_f32 v6, v6, v1",f"v_add_f32 v7, v7, v{r}"]
        return o+[f"v_cvt_pk_bf16_f32 v{b+j}, v6, v7"]
    for u in range(2):
        for j in range(4): p+=summ(8+4*u,8,j)
        p.append(f"buffer_store_dwordx4 v[{8+4*u}:{11+4*u}], v4, s[8:11], s21 offen offset:{32*u}")
    p+=["s_cmp_ge_u32 s14, 2","s_cbranch_scc1 L_end2"]+summ(40,2,0)+summ(40,2,1)+["buffer_store_dwordx2 v[40:41], v5, s[8:11], s22 offen"]
    return [x.txt for x in finalize([I(x) for x in p])]+["L_end2:","s_endpgm"]

ref=open(f"cdna_kernels/{NAME}.s.ref").read().split("\n")
hdr=[x for x in ref if x.startswith(";") and "@launch" not in x and "Override" not in x and "grid=ceil" not in x]
o=hdr+[f"; @launch kernel={NAME}_kernel grid=(256,1,1) block=(256,1,1) lds=163840","; @launch kernel=reduce_kernel grid=(256,1,1) block=(320,1,1) lds=0",'.amdgcn_target "amdgcn-amd-amdhsa--gfx950"',".text"]
for nm,body in ((NAME+"_kernel",k1()),("reduce_kernel",k2())):
    o+=[f".globl {nm}",".p2align 8",f".type {nm},@function",nm+":"]+body
o.append('.section .rodata,"a"')
for nm,nv,ao in ((NAME+"_kernel",512,256),("reduce_kernel",48,48)):
    o+=[".p2align 6",f".amdhsa_kernel {nm}",f"  .amdhsa_next_free_vgpr {nv}","  .amdhsa_next_free_sgpr 102",f"  .amdhsa_accum_offset {ao}","  .amdhsa_group_segment_fixed_size 0",
        "  .amdhsa_kernarg_size 104","  .amdhsa_user_sgpr_count 2","  .amdhsa_user_sgpr_kernarg_segment_ptr 1","  .amdhsa_system_sgpr_workgroup_id_x 1",".end_amdhsa_kernel"]
open(sys.argv[1],"w").write("\n".join(o)+"\n")
```

```python
import sys, numpy as np
from asmlib import *
from vexpr import Ctx, E, SV
NAME="concat_heads__gqa_block_cached__gqa_block_cached__near_ridge"
OPT=dict(ts=0, LA=200, ntw=1, ntx=0, kill="", dcost=8)
for a in sys.argv[2:]:
    k,v=a.split("="); OPT[k]=int(v) if v.lstrip("-").isdigit() else v
M32="v_mfma_f32_32x32x16_bf16"; M16="v_mfma_f32_16x16x32_bf16"; M16S="v_mfma_f32_16x16x16_bf16"
K0,K1,V0,V1=0,24576,49152,73728; GB=98304; G=[GB,GB+21504,GB+43008]; SP=162816
OITEM=55296; PART=32<<20; PT=46080
_v=[0]
def va(n,al=1):
    _v[0]=(_v[0]+al-1)//al*al; r=f"v{_v[0]}"; _v[0]+=n; return r
Q=va(48,4); QX=va(24,4); SA=va(16,4); SB=va(16,4); SX=va(4,4); NM=va(16,4); NX=va(4,4)
PA=va(28,4); PB=va(52,4)
dK=[va(1) for _ in range(6)]; dV=[va(1) for _ in range(3)]
rK=[va(1) for _ in range(4)]; rKx=[va(1) for _ in range(2)]; rV=[va(1) for _ in range(2)]; rVx=[va(1) for _ in range(4)]
dW=[va(1) for _ in range(3)]; dX=[va(1) for _ in range(3)]
rW=[va(1) for _ in range(2)]; rWx=[va(1) for _ in range(3)]; rX=[va(1) for _ in range(2)]; rXx=va(1)
dO=dW+dX[:2]; rO=rW[0]; rOx=rWx
vM=va(1); vE=va(1); LA_=va(1); LB_=va(1); LX=va(1); TM=va(1); T2=va(1); T3=va(1); TMX=va(1); VP=va(1); T4=va(1); T5=va(1)
assert _v[0]<=256,_v
O="a0"; OX="a96"; GA="a144"; GX="a240"
BSET=[[off(PB,4*k) for k in range(6)],[off(PB,24+4*k) for k in range(6)],[off(PB,48)]+["a224","a228","a232","a236","a252"]]
sK,sV,sWq,sX,sWo,sWS,sDB="s[4:7]","s[8:11]","s[12:15]","s[16:19]","s[20:23]","s[24:27]","s[28:31]"
CSC=hex(int(np.float32(192**-0.5*np.log2(np.e)).view(np.uint32)))
def srd(pre,r,base,adds,size):
    if adds: pre+= [I(f"s_add_u32 s{r}, s{base}, {adds}"),I(f"s_addc_u32 s{r+1}, s{base+1}, 0"),I(f"s_sub_u32 s{r+2}, {hex(size)}, {adds}")]
    else: pre+=[I(f"s_mov_b32 s{r}, s{base}"),I(f"s_mov_b32 s{r+1}, s{base+1}"),I(f"s_mov_b32 s{r+2}, {hex(size)}")]
    pre.append(I(f"s_mov_b32 s{r+3}, 0x20000"))
TS=[0]
def ts():
    if not OPT["ts"]: return []
    k=TS[0]; TS[0]+=1; assert k<16
    return [I(f"s_memtime s[{64+2*k}:{65+2*k}]")]

def k1():
    pre=[I("s_cmp_ge_u32 s2, 0x100"),I("s_cbranch_scc1 L_end")]+ts()
    if OPT.get("rot"): pre+=[I("s_lshl_b32 s3, s2, 5"),I("s_lshr_b32 s2, s2, 3"),I("s_or_b32 s2, s2, s3"),I("s_and_b32 s2, s2, 255")]
    pre+=[I("s_load_dwordx8 s[40:47], s[0:1], 0"),I("s_load_dwordx2 s[48:49], s[0:1], 32"),
          I("s_load_dwordx2 s[50:51], s[0:1], 40"),I("s_load_dwordx4 s[52:55], s[0:1], 48"),I("s_load_dwordx4 s[56:59], s[0:1], 64"),
          I("s_load_dwordx2 s[60:61], s[0:1], 88"),I("s_load_dwordx2 s[62:63], s[0:1], 96")]
    pre+=[I(x) for x in ["v_lshrrev_b32 v1, 6, v0","s_and_b32 s97, s2, 3","s_bfe_u32 s96, s2, 0x10002","s_bfe_u32 s98, s2, 0x30003","s_lshr_b32 s99, s2, 6",
          "v_readfirstlane_b32 s32, v1","s_lshl_b32 s100, s97, 2","s_add_u32 s100, s100, s99",
          "s_mul_i32 s37, s98, 5","s_lshr_b32 s37, s37, 1","s_mul_i32 s101, s99, 5","s_add_u32 s37, s37, s101",
          "s_cmp_ge_u32 s37, 20","s_cselect_b32 s101, 20, 0","s_sub_u32 s37, s37, s101","s_lshl_b32 s37, s37, 6",
          "s_mul_i32 s33, s32, 6144","s_mul_i32 s34, s32, 3072","s_lshl_b32 s35, s32, 11","s_mul_i32 s36, s32, 5120",
          "s_waitcnt lgkmcnt(0)","s_cmp_eq_u32 s96, 0","s_cselect_b64 s[40:41], s[40:41], s[50:51]","s_cselect_b64 s[42:43], s[42:43], s[52:53]",
          "s_cselect_b64 s[44:45], s[44:45], s[54:55]","s_cselect_b64 s[46:47], s[46:47], s[56:57]","s_cselect_b64 s[48:49], s[48:49], s[58:59]",
          "s_mul_i32 s101, s100, 384"]]
    srd(pre,12,46,"s101",7864320)
    pre.append(I("s_mul_i32 s101, s98, 184320")); srd(pre,16,40,"s101",1474560)
    pre+=[I("s_lshl_b32 s101, s98, 5"),I("s_add_u32 s101, s101, s100"),I("s_mul_i32 s101, s101, 196608")]
    srd(pre,4,42,"s101",50331648); srd(pre,8,44,"s101",50331648)
    pre.append(I("s_mul_i32 s101, s99, 320")); srd(pre,20,48,"s101",7864320)
    srd(pre,24,62,None,268435456); srd(pre,28,60,None,256)
    pre+=[I(x) for x in ["s_lshl_b32 s101, s32, 4","s_mov_b64 s[42:43], 0xffff","s_lshl_b64 s[42:43], s[42:43], s101"]]
    tid=np.arange(256); w_=tid>>6; l_=tid&63
    SV.update(s32=w_,s33=w_*6144,s35=w_*2048)
    c=Ctx(R(Q,40)); chk=[]
    l=(E(c,"v0",tid,False)&63).keep(); w=E(c,"v1",w_,False)
    wv=(w+0|0).keep()
    c.free=[r for r in c.free if r not in("v0","v1")]
    def div(q,n): return (q*(2731 if n==24 else 3277))>>16
    for j in range(3):
        q=(l+64*j|0).keep(); r=div(q,24).keep(); pc=(q-r*24); sw=((r&2)<<1)|((wv&1)<<1)
        e=(((wv<<3)+r)*12288+((pc^sw)<<4)-1024*j).to(dW[j]); q.drop(); r.drop()
        qq=64*j+l_; rr_=8*w_+qq//24; chk.append((e,rr_*12288+((qq%24)^((((rr_>>1)&1)<<2)|(((rr_>>3)&1)<<1)))*16-1024*j))
    xc=(((l&3)^((l>>4)&3))<<4).keep()
    e=(((wv<<5)+(l>>2))*1280+xc).to(dX[0]); chk.append((e,(32*w_+(l_>>2))*1280+((l_&3)^((l_>>4)&3))*16))
    (e+(16*1280-1024)).to(dX[1]); ((l>>2)*1280+xc+128*1280).to(dX[2]); xc.drop()
    pre1=c.out; c.out=[]
    rr=((l>>2)&3).keep(); cc=(l&3).keep(); h=(l>>5).keep(); g=(l>>4).keep(); Gg=(g&1).keep(); q16=(l&15).keep(); r32=(l&31).keep()
    rr_,cc_,h_,g_,G_=(l_>>2)&3,l_&3,l_>>5,l_>>4,(l_>>4)&1
    for d in range(2):
        e=(((h<<3)+rr)*384+(((((Gg<<1)+(cc&1))+4*d)^(((rr&2)<<1)|(h<<1)))<<4)+((cc>>1)<<3)+GB).to(rW[d])
        chk.append((e,GB+(8*h_+rr_)*384+((4*d+2*G_+(cc_&1))^(4*(rr_>>1)|2*h_))*16+8*(cc_>>1)))
    for e_ in range(3):
        e=(((g<<3)+rr)*384+(((((wv*3+e_)<<1)+(cc>>1))^(((rr&2)<<1)|(Gg<<1)))<<4)+((cc&1)<<3)+GB).to(rWx[e_])
        chk.append((e,GB+(8*g_+rr_)*384+((2*(3*w_+e_)+(cc_>>1))^(4*(rr_>>1)|2*G_))*16+8*(cc_&1)))
    for u in range(2):
        e=((r32<<6)+(((h+2*u|0)^((r32>>2)&3))<<4)+"s35"+(GB+12288)).to(rX[u])
        chk.append((e,GB+12288+2048*w_+(l_&31)*64+((2*u+h_)^(((l_&31)>>2)&3))*16))
    e=((q16<<6)+((g^(q16>>2))<<4)+(GB+20480)).to(rXx); chk.append((e,GB+20480+(l_&15)*64+(g_^((l_&15)>>2))*16))
    gs=rW+rWx+rX+[rXx]; alt={GB:gs,0:R(SA,8),V0:R(SB,8)}
    for b in (0,V0):
        for a,x in zip(gs,alt[b]): c.out.append(I(f"v_subrev_u32 {x}, {hex(GB-b)}, {a}"))
    pre2=c.out; c.out=[]
    for j in range(6):
        r=div(l+64*j|0,24); e=(((l^((r>>1)&7))<<4)+"s33"+(4096 if j>=4 else 0)).to(dK[j])
        chk.append((e,16*(l_^((((64*j+l_)//24)>>1)&7))+6144*w_+(4096 if j>=4 else 0)))
    for j in range(3):
        r=div(l+64*j|0,24).keep(); e=(((l^(((r&2)<<1)|((r&4)>>1)))<<4)+"s33").to(dV[j]); r.drop()
        r_=(64*j+l_)//24; chk.append((e,16*(l_^((((r_>>1)&1)<<2)|(((r_>>2)&1)<<1)))+6144*w_))
    for m in range(4):
        e=(r32*384+(((h+2*m|0)^((r32>>1)&7))<<4)).to(rK[m]); chk.append((e,(l_&31)*384+((2*m+h_)^(((l_&31)>>1)&7))*16))
    for t in range(2):
        e=(q16*384+(((g+4*t|0)^(q16>>1))<<4)+"s33").to(rKx[t]); chk.append((e,(16*w_+(l_&15))*384+((4*t+g_)^((l_&15)>>1))*16))
    for d in range(2):
        e=(((h<<2)+rr)*384+(((((Gg<<1)+(cc>>1))+4*d)^(((rr&2)<<1)|(h<<1)))<<4)+((cc&1)<<3)+V0).to(rV[d])
        chk.append((e,V0+(4*h_+rr_)*384+((4*d+2*G_+(cc_>>1))^(4*(rr_>>1)|2*h_))*16+8*(cc_&1)))
    for k in range(4):
        e=(((g<<2)+rr)*384+((((cc>>1)+2*k)^(((rr&2)<<1)|(Gg<<1)))<<4)+((cc&1)<<3)+"s33"+V0).to(rVx[k])
        chk.append((e,V0+(16*w_+4*g_+rr_)*384+((2*k+(cc_>>1))^(4*(rr_>>1)|2*G_))*16+8*(cc_&1)))
    (wv*12288+(l<<4)).to(vM); ((l<<4)+49152).to(vE)
    pre3=c.out
    for e,ref in chk: assert (e.val==(ref&0xffffffff)).all(), e.reg
    pre3+=[I(x) for x in ["s_mov_b64 s[44:45], 1","s_lshl_b32 s101, s96, 3","s_add_u32 s101, s101, s98","s_lshl_b32 s57, s101, 2","s_add_u32 s57, s57, s97","s_lshl_b32 s57, s57, 2",
        "s_lshl_b32 s58, s97, 4","s_add_u32 s58, s58, s101","s_lshl_b32 s58, s58, 2","s_add_u32 s58, s58, s99",f"s_mul_i32 s58, s58, {PT}",f"s_add_u32 s58, s58, {hex(PART)}",
        "s_lshl_b32 s101, s101, 5"]]
    for i in range(4):
        pre3+=[I(x) for x in [f"s_add_u32 s40, s99, {i}","s_and_b32 s40, s40, 3","s_lshl_b32 s41, s97, 2","s_add_u32 s40, s40, s41",f"s_mul_i32 s{48+i}, s40, {192*1280}",
               "s_add_u32 s40, s40, s101",f"s_mul_i32 s{52+i}, s40, {OITEM}"]]
    for e_ in range(3):
        pre3+=[I(x) for x in ["s_mul_i32 s40, s32, 3",f"s_add_u32 s40, s40, {e_}","s_and_b32 s41, s40, 1","s_lshr_b32 s40, s40, 1","s_lshl_b32 s40, s40, 10","s_lshl_b32 s41, s41, 3",f"s_add_u32 s{60+e_}, s40, s41"]]
    HO=R(off(PB,24),9)
    def wo_regs():
        c=Ctx(R(QX,24)); ck=[]; dO=HO[:5]; rO=HO[5]; rOx=HO[6:9]
        l=((E(c,vE,16*l_+49152,False)>>4)&63).keep(); wv=((l&0)+"s32").keep()
        for j in range(5):
            q=(l+64*j|0).keep(); r=div(q,20).keep(); pc=q-r*20
            e=(((wv<<4)+r)*1280+((pc^((r&4)>>1))<<4)-1024*(j%4)).to(dO[j]); q.drop(); r.drop()
            qq=64*j+l_; r_=qq//20; ck.append((e,(16*w_+r_)*1280+((qq%20)^(((r_>>2)&1)<<1))*16-1024*(j%4)))
        rr=((l>>2)&3).keep(); h=(l>>5).keep(); g=(l>>4).keep(); Gg=(g&1).keep()
        e=(((h<<2)+rr)*320+((((Gg<<1)+(l&1))^(h<<1))<<4)+((l&2)<<2)+GB).to(rO); ck.append((e,GB+(4*h_+rr_)*320+((2*G_+(cc_&1))^(2*h_))*16+8*(cc_>>1)))
        base=(((g<<2)+rr)*320+((l&1)<<3)+GB).keep(); lo=((l>>1)&1).keep()
        for e_ in range(3):
            blk=wv+4*e_ if e_<2 else (wv&1)+8
            e=(base+((((blk<<1)+lo)^(Gg<<1))<<4)).to(rOx[e_]); b_=w_+4*e_ if e_<2 else (w_&1)+8
            ck.append((e,GB+(4*g_+rr_)*320+((2*b_+(cc_>>1))^(2*G_))*16+8*(cc_&1)))
        for e,ref in ck: assert (e.val==(ref&0xffffffff)).all(), e.reg
        return c.out
    def D(txt,tag): i=I(txt,tag); i.cost=OPT["dcost"]; return i
    def m0(s,c_): return I(f"s_add_u32 m0, {s}, {hex(c_)}")
    ntw=" nt" if OPT["ntw"] else ""; ntx=" nt" if OPT["ntx"] else ""
    def dmaT(t):
        so=(t//16)*3145728+((t%16)//2)*24576; slot=[K0,V0,K1,V1][t%4]; tg=("T",t); o=[]
        for j in range(6):
            p=[]
            if t%2==0:
                if j in(0,4): p.append(m0("s33",slot+(4096 if j else 0)))
                if j==0: p.append(I(f"s_mov_b32 s39, {hex(so)}"))
                p.append(D(f"buffer_load_dwordx4 {dK[j]}, {sK}, s39 offen offset:{1024*(j%4)} nt lds",tg))
            else:
                if j in(0,3): p+=[m0("s33",slot+1024*j),I(f"s_mov_b32 s39, {hex(so+1024*j)}")]
                p.append(D(f"buffer_load_dwordx4 {dV[j%3]}, {sV}, s39 offen offset:{1024*(j%3)} nt lds",tg))
            o.append(p)
        return o
    def dmaQ(rnd,s,slot):
        tg=("GQ",rnd,s); o=[]
        p=[m0("s34",slot)]
        if not(rnd==0 and s==0): p+=[I("s_add_u32 s37, s37, 64"),I("s_cmp_eq_u32 s37, 0x500"),I("s_cselect_b32 s37, 0, s37")]
        p+=[I("s_mul_i32 s38, s37, 6144")]+([I("s_add_u32 s38, s38, 6144")] if rnd else [])
        for j in range(3):
            o.append(p+[D(f"buffer_load_dwordx4 {dW[j]}, {sWq}, s38 offen offset:{1024*j}{ntw} lds",tg)]); p=[]
        o.append([m0("s35",slot+12288),D(f"buffer_load_dwordx4 {dX[0]}, {sX}, s37 offen{ntx} lds",tg)])
        o.append([D(f"buffer_load_dwordx4 {dX[1]}, {sX}, s37 offen offset:1024{ntx} lds",tg)])
        o.append([I(f"s_mov_b32 m0, {hex(slot+20480)}"),I("s_mov_b64 exec, s[42:43]"),D(f"buffer_load_dwordx4 {dX[2]}, {sX}, s37 offen{ntx} lds",tg),I("s_mov_b64 exec, -1")])
        return o
    def dmaO(k):
        slot=G[(k+1)%3]; tg=("GO",k); o=[]; i=(k%12)//3
        for j in range(5):
            p=[]
            if j in(0,4): p.append(m0("s36",slot+(4096 if j else 0)))
            if j==0: p.append(I(f"s_add_u32 s38, s{48+i}, {hex((k//12)*16*192*1280+(k%3)*64*1280)}"))
            o.append(p+[D(f"buffer_load_dwordx4 {dO[j]}, {sWo}, s38 offen offset:{1024*(j%4)}{ntw} lds",tg)])
        return o
    def ldB(k):
        i=(k%12)//3; b=BSET[k%3]; base=(k//12)*16*OITEM; o=[]
        for u in range(6):
            p=[]
            if u==0: p.append(I(f"s_add_u32 s59, s{52+i}, {hex(base+(k%3)*4096)}"))
            if u==4: p.append(I(f"s_add_u32 s59, s{52+i}, {hex(base+(k%3)*2048)}"))
            o.append(p+[D(f"buffer_load_dwordx4 {T(b[u],4)}, {vM if u<4 else vE}, {sWS}, s59 offen offset:{1024*(u%4)} sc1",("B",k))])
        return o
    def f128(a,imm,pool="A"): return Frag(4,lambda r:[I(f"ds_read_b128 {T(r,4)}, {a} offset:{imm}")],pool)
    def ftr(a0,i0,a1,i1): return Frag(4,lambda r:[I(f"ds_read_b64_tr_b16 {T(r,2)}, {a0} offset:{i0}"),I(f"ds_read_b64_tr_b16 {T(off(r,2),2)}, {a1} offset:{i1}")])
    def mQK(it,t,c0):
        sl=24576*(it%2); S=[SA,SB][t]
        return [M(M32,S,f128(rK[ks%4],sl+t*12288+(ks>>2)*128),off(Q,4*ks),c0 if ks==0 else None) for ks in range(12)]
    def mQKx(it,c0): return [M(M16,SX,f128(rKx[t&1],24576*(it%2)+(t>>1)*128),off(QX,4*t),c0 if t==0 else None) for t in range(6)]
    def mPV(it,t,dbm=False):
        sl=24576*(it%2); S=[SA,SB][t]; o=[]
        for u,db in (sorted([(u,db) for u in range(2) for db in range(6)],key=lambda x:(x[1],x[0])) if dbm else [(u,db) for u in range(2) for db in range(6)]):
            im=sl+(db>>1)*128+(32*t+16*u)*384
            o.append(M(M32,off(O,16*db),ftr(rV[db&1],im,rV[db&1],im+8*384),off(S,8*u),"0" if(it==0 and t==0 and u==0) else None))
        return o
    def mPVx(it):
        o=[]
        for b2 in range(6):
            b=2*b2; im=24576*(it%2)+(b>>2)*128; f=ftr(rVx[b&3],im,rVx[(b+1)&3],im)
            for e_ in range(2): o.append(M(M16S,off(OX,4*(b+e_)),(f,2*e_),SX,"0" if it==0 else None,na=2))
        return o
    def mGQ(s,slot):
        b=GB if slot>=GB else V0 if slot>=V0 else 0; a=alt[b]; sl=slot-b
        xf=[f128(a[5+u],sl,"B") for u in range(2)]; xe=f128(a[7],sl,"B")
        mn=[[M(M32,off(GA,16*db),ftr(a[db&1],sl+(db>>1)*128+16*u*384,a[db&1],sl+(db>>1)*128+(16*u+4)*384),xf[u],"0" if(s==0 and u==0) else None) for db in range(6)] for u in range(2)]
        ex=[M(M16,off(GX,4*e_),ftr(a[2+e_],sl,a[2+e_],sl+4*384),xe,"0" if s==0 else None) for e_ in range(3)]
        return mn,ex
    def mGO(k):
        sl=G[(k+1)%3]-GB; b=BSET[k%3]
        mn=[[M(M32,off(GA,16*cb),ftr(rO,sl+64*cb+16*u*320,rO,sl+64*cb+(16*u+8)*320),b[u],"0" if(k==0 and u==0) else None) for cb in range(5)] for u in range(4)]
        ex=[M(M16,off(GX,4*e_),ftr(rOx[e_],sl+32*t*320,rOx[e_],sl+(32*t+16)*320),b[4+t],"0" if(k==0 and t==0) else None) for t in range(2) for e_ in range(3)]
        return mn,ex
    def flat(me):
        mn,ex=me; o=[m for r in mn for m in r]; n=len(o); st=n//len(ex); res=[]
        for i,m in enumerate(o):
            res.append(m)
            if i%st==st-1 and ex[i//st:i//st+1]: res.append(ex[i//st])
        for x in ex:
            if x not in res: res.append(x)
        return res
    def ilv(a,b):
        o=[]
        for i in range(max(len(a),len(b))): o+=a[i:i+1]+b[i:i+1]
        return o
    spine=[]; rs=[]; fills=[]; tagf={}; stubs=[]
    def half(ms,waits=(),deps=(),dma=(),lg=False,bar=True,extra=(),dlo=1):
        st=len(spine)
        if bar:
            dp=list(deps)
            for t in waits: dp+=tagf.get(t,[])
            rs.append(([WaitVM(waits)]+([I("s_waitcnt lgkmcnt(0)")] if lg else [])+[I("s_barrier")]+list(extra),st,dp))
        for m in ms:
            m.i=len(spine); spine.append(m)
            for f in m.fr:
                if not getattr(f,"q",0): f.q=1; rs.append((f,m.i))
        en=len(spine); n=len(dma)
        if n:
            span=max(en-st-dlo-3,1)
            for k,p in enumerate(dma):
                lo=min(st+dlo+k*span//n,en-2); f=Fill(p,lo,min(lo+3,en-1),"dma"); fills.append(f)
                for x in p:
                    if x.tag is not None and x.kind=="vmem": tagf.setdefault(x.tag,[]).append(f)
        return st,en
    def F(txts,lo,hi,ch):
        f=Fill([I(t) if isinstance(t,str) else t for t in (txts if isinstance(txts,list) else [txts])],lo,hi,ch); fills.append(f); return f
    def maxch(S,n,tm):
        o=[f"v_max3_f32 {tm}, {S}, {off(S,1)}, {off(S,2)}"]
        for k in range(3,n-1,2): o.append(f"v_max3_f32 {tm}, {tm}, {off(S,k)}, {off(S,k+1)}")
        o.append(f"v_max_f32 {tm}, {tm}, {off(S,n-1)}"); return o
    def red(x,t,op,n16):
        o=[f"v_mov_b32 {t}, {x}","s_nop 0",f"v_permlane32_swap_b32 {x}, {t}",f"{op} {x}, {x}, {t}"]
        if n16: o+=[f"v_mov_b32 {t}, {x}","s_nop 0",f"v_permlane16_swap_b32 {x}, {t}",f"{op} {x}, {x}, {t}"]
        return o
    def check(S,n,tm,sub,lo,hi,ch):
        for x in maxch(S,n,tm): F(x,lo,hi,ch)
        k=len(stubs); stubs.append((k,sub))
        F([f"v_cmp_lt_f32 vcc, 0x41000000, {tm}",f"s_cbranch_vccnz L_fb{k}",Label(f"L_rt{k}")],lo,hi,ch)
    def init(S,n,tm,t,N,lo,hi,hi2,ch):
        for x in maxch(S,n,tm): F(x,lo,hi,ch)
        F(red(tm,t,"v_max_f32",n==4),lo,hi,ch)
        for k in range(n): F(f"v_sub_f32 {off(N,k)}, 0, {tm}",lo,hi,ch)
        for k in range(n): F(f"v_sub_f32 {off(S,k)}, {off(S,k)}, {tm}",lo,hi2,ch)
    def smx(S,n,lo,his,ch,first,la,lb):
        for k in range(0,n,2):
            hi=his[k//8]; a,b=off(S,k),off(S,k+1)
            F([f"v_exp_f32 {a}, {a}",f"v_exp_f32 {b}, {b}"],lo,hi,ch)
            z=first and k==0
            F([f"v_add_f32 {la}, {'0' if z else la}, {a}",f"v_add_f32 {lb}, {'0' if (z and la!=lb) else lb}, {b}",f"v_cvt_pk_bf16_f32 {off(S,(k//8)*8+(k%8)//2)}, {a}, {b}"],lo,hi,ch)
    tg=[0]
    def cvt8(src,n,mul,dst,lo,hi,ch):
        t=off(SA,8*(tg[0]%4)) if ch!="ep" else [SB,off(SB,8),NM,off(NM,8)][tg[0]%4]; tg[0]+=1
        for k in range(0,n,4): F([f"v_accvgpr_read_b32 {off(t,k+j)}, {off(src,k+j)}" for j in range(4)],lo,hi,ch)
        if mul:
            for k in range(0,n,4): F([f"v_mul_f32 {off(t,k+j)}, {mul}, {off(t,k+j)}" for j in range(4)],lo,hi,ch)
        d=dst or t
        F([f"v_cvt_pk_bf16_f32 {off(d,j)}, {off(t,2*j)}, {off(t,2*j+1)}" for j in range(n//2)],lo,hi,ch)
        return d
    def qlast(rnd,waits,dma,deps=()):
        (a,ax),(b,bx)=mGQ(18,G[1]),mGQ(19,G[2]); ms=ilv(ax,a[0][:3])+ilv(bx,a[0][3:])
        for db in range(6): ms+=[a[1][db],b[0][db],b[1][db]]
        st,en=half(ms,waits,deps,dma)
        lo=bx[2].i+1; ws=[]
        F([f"v_lshrrev_b32 {T4}, 4, {vE}",f"v_and_b32 {T5}, 15, {T4}",f"v_mul_u32_u24 {T5}, 0x190, {T5}",f"v_bfe_u32 {T4}, {T4}, 4, 2"],st,en,"ep")
        F([f"v_lshl_add_u32 {T3}, {T4}, 4, {T5}",f"v_lshl_add_u32 {T4}, {T4}, 3, {T5}","s_mul_i32 s40, s32, 96",f"v_add_u32 {T4}, s40, {T4}",f"v_add_u32 {T3}, {hex(G[0])}, {T3}",f"v_add_u32 {T4}, {hex(G[0])}, {T4}"],st,en,"ep")
        for e_ in range(3):
            d=cvt8(off(GX,4*e_),4,CSC,None,lo,en,"ep"); ws.append(F(f"ds_write_b64 {T4}, {T(d,2)} offset:{32*e_}",lo,en,"ep"))
        for db in range(6):
            for u in range(2): cvt8(off(GA,16*db+8*u),8,CSC,off(Q,8*db+4*u),b[1][db].i+1,en+2*db+u,"ep")
        return ws
    def att(rnd,gl,dm,ws,wt):
        for it in range(8):
            n=2*it; t0=16*rnd+n; g=gl.get(n,[])
            a=mQK(it,0,"0" if it==0 else NM); b=mQK(it,1,NM); x=mQKx(it,"0" if it==0 else NX)
            ms=a+g[:3]+b+ilv(x,g[3:9])+g[9:] if g else a+x+b
            st,en=half(ms,[("T",t0)]+wt.get(n,[]),ws if it==0 else (),dm.get(n,[]),lg=it==0,extra=ts() if it in(0,4) else ())
            if it==0:
                for t in range(6): F(f"ds_read_b128 {T(off(QX,4*t),4)}, {T3} offset:{64*t}",st,x[0].i-2,"qx")
            pa,pb,px=mPV(it,0),mPV(it,1,it==7),mPVx(it); g=gl.get(n+1,[])
            st2,en2=half(pa+g+pb+px if it<7 else pa+g+px+pb,[("T",t0+1)]+wt.get(n+1,[]),(),dm.get(n+1,[]))
            if it==0:
                init(SA,16,TM,T2,NM,a[-1].i+1,b[0].i,pa[0].i,"sm"); init(SX,4,TMX,T5,NX,x[-1].i+1,px[0].i,px[0].i,"sx")
            else:
                check(SA,16,TM,"L_FA",a[-1].i+1,b[0].i,"sm"); check(SX,4,TMX,"L_FX",x[-1].i+1,px[0].i,"sx")
            smx(SA,16,a[-1].i+1,[pa[0].i,pa[6].i],"sm",it==0,LA_,LB_)
            check(SB,16,TM,"L_FB",b[-1].i+1,pa[0].i,"sm")
            smx(SB,16,b[-1].i+1,[pb[0].i,pb[6 if it<7 else 1].i],"sm",False,LA_,LB_)
            smx(SX,4,x[-1].i+1,[px[0].i],"sx",it==0,LX,LX)
        lo=px[0].i
        F(red(LX,T5,"v_add_f32",True),lo,en2,"sx")
        F([f"v_bfe_u32 {T4}, {vE}, 4, 4",f"v_lshlrev_b32 {T4}, 3, {T4}",f"v_add_u32 {T4}, {hex(SP)}, {T4}","s_lshl_b32 s40, s32, 7",f"v_add_u32 {T5}, s40, {T4}",f"v_mov_b32 {off(NX,1)}, {LX}"],lo,en2,"sx")
        wml=F(f"ds_write_b64 {T5}, {T(NX,2)}",lo,en2,"sx")
        F([f"v_add_f32 {LA_}, {LA_}, {LB_}"]+red(LA_,T2,"v_add_f32",False)+[f"v_rcp_f32 {LA_}, {LA_}"],pb[1].i,en2,"sm")
        return wml,pb
    def epi(rnd,wml,pb,g3,dm3,wt3):
        ob=rnd*16*OITEM; st0,en0=half(g3[0],wt3[0],[wml],dm3[0],lg=True,extra=ts())
        m4=R(QX,8);
        F([f"ds_read_b64 {T(m4[2*k],2)}, {T4} offset:{128*k}" for k in range(4)],st0-1,en0,"ex")
        F([f"v_min3_f32 {T5}, {m4[0]}, {m4[2]}, {m4[4]}",f"v_min_f32 {T5}, {T5}, {m4[6]}"]+[f"v_sub_f32 {m4[2*k]}, {T5}, {m4[2*k]}" for k in range(4)]+[f"v_sub_f32 {T5}, {T5}, {NX}"],st0,en0,"ex")
        F([f"v_exp_f32 {m4[2*k]}, {m4[2*k]}" for k in range(4)]+[f"v_exp_f32 {T5}, {T5}"],st0,en0,"ex")
        F([f"v_mul_f32 {LX}, {m4[0]}, {m4[1]}"]+[f"v_fmac_f32 {LX}, {m4[2*k]}, {m4[2*k+1]}" for k in range(1,4)]+[f"v_rcp_f32 {LX}, {LX}",f"v_lshrrev_b32 {T4}, 1, {vE}",f"v_mul_f32 {LX}, {LX}, {T5}",
           f"v_add_u32 {T4}, {hex(V1-24576)}, {T4}",f"v_add_u32 {T5}, s33, {T4}","s_mul_i32 s40, s32, 1536",f"v_add_u32 {T4}, s40, {T4}"],st0,en0,"ex")
        wr=[]
        for b in range(12):
            d=cvt8(off(OX,4*b),4,LX,None,st0,en0,"ex"); wr.append(F(f"ds_write_b64 {T5}, {T(d,2)} offset:{512*b}",st0,en0,"ex"))
        st1,en1=half(g3[1],wt3[1],wr,dm3[1],lg=True)
        sf=[]; rds=[]
        for e_ in range(3):
            rds.append(F([f"ds_read_b64 {T(m4[2*k],2)}, {T4} offset:{6144*k+512*e_}" for k in range(4)],st1-1,en1-6,"ex"))
            a=R(off(QX,8),8)
            for k in range(4):
                for j in range(2):
                    x,y=(a[2*j],a[2*j+1]) if k==0 else (a[4],a[5])
                    F([f"v_lshlrev_b32 {x}, 16, {m4[2*k+j]}",f"v_and_b32 {y}, 0xffff0000, {m4[2*k+j]}"]+([f"v_add_f32 {a[2*j]}, {a[2*j]}, {x}",f"v_add_f32 {a[2*j+1]}, {a[2*j+1]}, {y}"] if k else []),st1,en1-4,"ex")
            d=off(QX,16+2*e_)
            sf.append(F([f"v_cvt_pk_bf16_f32 {d}, {a[0]}, {a[1]}",f"v_cvt_pk_bf16_f32 {off(d,1)}, {a[2]}, {a[3]}",f"s_add_u32 s40, s52, s{60+e_}",f"s_add_u32 s40, s40, {hex(ob)}",
               I(f"buffer_store_dwordx2 {T(d,2)}, {vE}, {sWS}, s40 offen sc1",("O",rnd))],st1,en1-2,"ex"))
        st2,en2=half(g3[2],wt3[2],rds,dm3[2])
        for s in range(12):
            lo=max(pb[(s//2)*2+1].i+1,0); hi=en2-2
            if s>=2: lo=max(lo,wr[-1].lo)
            d=cvt8(off(O,8*s),8,LA_,None,lo,hi,"ex" if s>=NEARLY else "e0")
            sf.append(F([f"s_add_u32 s41, s52, {hex(ob+(s//4)*4096)}",I(f"buffer_store_dwordx4 {T(d,4)}, {vM}, {sWS}, s41 offen offset:{1024*(s%4)} sc1",("O",rnd))],lo,hi,"ex" if s>=NEARLY else "e0"))
        return sf,st2,en2
    NEARLY=0
    def publish(rnd,lo,hi,ch):
        return F([WaitVM([("O",rnd)]),f"v_mov_b32 {T2}, {hex(1<<(16*rnd))}","s_mov_b64 exec, s[44:45]",I(f"buffer_atomic_add {T2}, off, {sDB}, s57 sc1",("A",rnd)),"s_mov_b64 exec, -1"],lo,hi,ch)
    def poll(rnd,lo,lo2,hi):
        F(I(f"buffer_load_dword {VP}, off, {sDB}, s57 sc1",("P",rnd)),lo,lo+1,"dma")
        F([f"v_readfirstlane_b32 s40, {VP}",f"s_bfe_u32 s40, s40, {hex(0x100000|16*rnd)}","s_cmp_lt_u32 s40, 16",f"s_cbranch_scc1 L_sp{rnd}",Label(f"L_pr{rnd}")],lo2,hi,"dma")
    hs=[G[0],G[1],G[2],K0,K1,V0,V1]; slot={s:hs[s%7] for s in range(17)}; slot.update({17:G[0],18:G[1],19:G[2]})
    prog=pre+pre1
    for s in range(7):
        for p in dmaQ(0,s,slot[s]): prog+=p
        tagf[("GQ",0,s)]=[]
        if s==1: prog+=pre2
    prog+=pre3+wo_regs()
    for s in range(18):
        if 1<=s<=10: d=dmaQ(0,s+6,slot[s+6])
        elif 11<=s<=14: d=dmaT([0,2,1,3][s-11])
        elif s>=15: d=dmaQ(0,s+2,slot[s+2])
        else: d=[]
        half(flat(mGQ(s,slot[s])),[("GQ",0,s)],(),d,extra=ts() if s in(0,10) else ())
    ws=qlast(0,[("GQ",0,18),("GQ",0,19)],[])
    gl={n:flat(mGQ(n-1,G[n%3])) for n in range(1,16)}
    dm={n:(dmaQ(1,0,G[1]) if n==0 else [])+dmaQ(1,n+1,G[(n+2)%3])+(dmaT(n+3) if n>=1 else []) for n in range(16)}
    wml,pb=att(0,gl,dm,ws,{n:[("GQ",1,n-1)] for n in range(1,16)})
    sf,st2,en2=epi(0,wml,pb,[flat(mGQ(15+k,G[(16+k)%3])) for k in range(3)],[dmaQ(1,17,G[0]),dmaQ(1,18,G[1]),dmaQ(1,19,G[2])+dmaT(19)],[[("GQ",1,15+k)] for k in range(3)])
    ws=qlast(1,[("GQ",1,18),("GQ",1,19)],[],sf)
    en=len(spine)
    publish(0,en-8,en-4,"ep")
    F([f"v_mov_b32 {a}, {b}" for a,b in zip(dO,HO[:5])],en-20,en-2,"dma")
    use={2:0,4:1,6:2,8:3,9:4,10:5,12:6,13:7,14:8}
    gl={n:flat(mGO(k)) for n,k in use.items()}
    dm={n:[] for n in range(16)}; dm[0]=dmaO(0)+dmaO(1); dm[1]=dmaO(2)+ldB(0)+ldB(1)+ldB(2)
    for n,k in use.items(): dm[n+1]=ldB(k+3)+dmaO(k+3)
    for n in range(1,13): dm[n]+=dmaT(16+n+3)
    n0=len(fills); i0=len(spine)
    F([f"v_mov_b32 {a}, {b}" for a,b in zip([rO]+rOx,HO[5:])],i0-1,i0+20,"mv")
    poll(0,i0,i0+29,i0+31)
    pl=fills[-2:]; del fills[-2:]
    fills.append(pl[0]); nb=len(fills)
    wml,pb=att(1,gl,dm,ws,{n:[("GO",k)] for n,k in use.items()})
    j=[i for i in range(nb,len(fills)) if fills[i].chain=="dma"][len(dm[0])]; fills.insert(j,pl[1])
    sf,st2,en2=epi(1,wml,pb,[flat(mGO(9+k)) for k in range(3)],[[],dmaO(12),dmaO(13)],[[("GO",9+k)] for k in range(3)])
    pub=publish(1,en2-2,en2,"ex")
    for k in range(12,24):
        mn,ex=mGO(k)
        ms=flat((mn,ex)) if k<23 else ilv(ex,mn[0]+[mn[1][0]])+[mn[2][0],mn[3][0]]+[mn[u][cb] for cb in range(1,5) for u in range(1,4)]
        if k==12:
            x=[i for p in ldB(12)+ldB(13) for i in p]+ts()
            st,en=half(ms,[("GO",k),("O",1)],[pub],ldB(14)+dmaO(14),extra=x); poll(1,en-3,en,en+1); pl=fills.pop()
        else:
            if k==13: fills.append(pl)
            st,en=half(ms,[("GO",k)],(),(ldB(k+2)+dmaO(k+2)) if k+2<24 else [])
    F(["s_lshl_b32 s40, s32, 11","s_mul_i32 s41, s32, 12288",f"v_subrev_u32 {T4}, s40, {vM}",f"v_subrev_u32 {T5}, s41, {vM}",f"v_lshrrev_b32 {T5}, 1, {T5}","s_lshl_b32 s40, s32, 9","s_add_u32 s60, s58, s40",
       "s_and_b32 s40, s40, 0x200","s_add_u32 s62, s58, s40"],st,en,"fin")
    for e_ in range(3):
        d=cvt8(off(GX,4*e_),4,None,None,ex[-1].i+1,en,"fin")
        F([f"s_add_u32 s40, {'s62' if e_==2 else 's60'}, {hex(40960+2048*e_)}",f"buffer_store_dwordx2 {T(d,2)}, {T5}, {sWS}, s40 offen"],ex[-1].i+1,en,"fin")
    for s in range(10):
        lo=min(mn[3][s//2].i+1,en-1); d=cvt8(off(GA,8*s),8,None,None,lo,en,"fin")
        F([f"s_add_u32 s40, s58, {hex((s//4)*4096)}",f"buffer_store_dwordx4 {T(d,4)}, {T4}, {sWS}, s40 offen offset:{1024*(s%4)}"],lo,en,"fin")
    rs.sort(key=lambda x:x[1])
    pa_=Pool(PA,7)
    if OPT.get("bigp"): pa_.free+=[off(PB,24+4*k) for k in range(6)]
    prog+=schedule(spine,rs,fills,{"A":pa_,"B":Pool(PB,6)},LA=OPT["LA"])
    kl=OPT["kill"]
    if kl:
        km={"T":"T","GQ":"G","GO":"W","B":"B","O":"S","A":"P","P":"P"}
        prog=[x for x in prog if not(x.kind=="vmem" and x.tag and km[x.tag[0]] in kl) and not(x.txt.startswith("s_cbranch_vccnz")) and not("P" in kl and "L_sp" in x.txt)]
        if "C" in kl:
            k0=[i for i,x in enumerate(prog) if x.txt=="s_barrier"][0]
            def cf(x):
                if x.txt.startswith("ds_read_b128") or "tr_b16" in x.txt:
                    p=x.txt.split(); return I(f"{p[0]} {p[1]} {vE if 'b128' in p[0] else VP} offset:{int(p[3][7:])&0x3c00}")
                return x
            prog=prog[:k0]+[I(f"v_lshrrev_b32 {VP}, 1, {vE}")]+[cf(x) for x in prog[k0:]]
        if "Z" in kl: prog=[I("s_mov_b32 s39, 0") if x.txt.startswith("s_mov_b32 s39") else x for x in prog]
        if "Y" in kl: prog=[I(x.txt.replace(" lds","").replace("dwordx4 ","dwordx4 "+T(off(PB,48),4)+", "),None) if (x.kind=="vmem" and x.txt.endswith("lds")) else x for x in prog]
        if "N" in kl: OPT["nolg"]=1
        if "R" in kl: prog=[x for x in prog if x.txt!="s_barrier"]
        if "V" in kl: prog=[x for x in prog if not x.txt.startswith(("v_exp","v_max3","v_add_f32","v_cvt"))]
        if "L" in kl: prog=[x for x in prog if not x.txt.startswith("ds_read")]
    prog+=ts()
    if OPT["ts"]:
        prog+=[I("s_waitcnt lgkmcnt(0)"),I("s_lshl_b32 s40, s2, 8"),I(f"s_add_u32 s40, s40, {hex(64<<20)}"),I("s_lshl_b32 s41, s32, 6"),I("s_add_u32 s40, s40, s41"),I("s_mov_b64 exec, 1")]
        for k in range(TS[0]): prog+=[I(f"v_mov_b32 {T2}, s{64+2*k}"),I(f"buffer_store_dword {T2}, off, {sWS}, s40 offset:{4*k}")]
    prog+=[Label("L_end"),I("s_endpgm")]
    st={}; out=finalize(prog,age=OPT.get("age",96),stats=st); print("k1",st,"mfma",len(spine),"cyc",sum(m.dur for m in spine),file=sys.stderr)
    txt=[x.txt for x in out]
    if OPT.get("nolg"): k0=txt.index("s_barrier"); txt=txt[:k0]+[x for x in txt[k0:-40] if "lgkmcnt" not in x]+txt[-40:]
    for k,sub in stubs: txt+=[f"L_fb{k}:",f"s_call_b64 s[46:47], {sub}",f"s_branch L_rt{k}"]
    for nm,S,N,n,tm,t,acc,na,ls in (("L_FA",SA,NM,16,TM,T2,O,96,[LA_,LB_]),("L_FB",SB,NM,16,TM,T2,O,96,[LA_,LB_]),("L_FX",SX,NX,4,TMX,T5,OX,48,[LX])):
        p=["s_nop 15","s_nop 15"]+red(tm,t,"v_max_f32",n==4)+[f"v_max_f32 {tm}, 0, {tm}"]
        p+=[f"v_sub_f32 {off(S,k)}, {off(S,k)}, {tm}" for k in range(n)]+[f"v_sub_f32 {off(N,k)}, {off(N,k)}, {tm}" for k in range(n)]
        p+=[f"v_exp_f32 {tm}, -{tm}","s_nop 1"]+[f"v_mul_f32 {x}, {x}, {tm}" for x in ls]
        for k in range(na): p+=[f"v_accvgpr_read_b32 {t}, {off(acc,k)}",f"v_mul_f32 {t}, {t}, {tm}",f"v_accvgpr_write_b32 {off(acc,k)}, {t}"]
        if nm=="L_FB":
            for r in R(SA,4)+R(off(SA,8),4):
                p+=[f"v_lshlrev_b32 {t}, 16, {r}",f"v_and_b32 {r}, 0xffff0000, {r}",f"v_mul_f32 {t}, {t}, {tm}",f"v_mul_f32 {r}, {r}, {tm}",f"v_cvt_pk_bf16_f32 {r}, {t}, {r}"]
        txt+=[nm+":"]+[x.txt for x in finalize([I(x) for x in p])]+["s_nop 3","s_setpc_b64 s[46:47]"]
    for r in range(2):
        txt+=[f"L_sp{r}:","s_sleep 2",f"buffer_load_dword {VP}, off, {sDB}, s57 sc1","s_waitcnt vmcnt(0)",f"v_readfirstlane_b32 s40, {VP}","s_nop 0",f"s_bfe_u32 s40, s40, {hex(0x100000|16*r)}","s_cmp_lt_u32 s40, 16",f"s_cbranch_scc1 L_sp{r}",f"s_branch L_pr{r}"]
    return txt

def k2():
    p=["s_cmp_ge_u32 s2, 0x100","s_cbranch_scc1 L_end2","s_load_dwordx2 s[4:5], s[0:1], 96","s_load_dwordx2 s[8:9], s[0:1], 80",
       "v_lshrrev_b32 v1, 6, v0","v_and_b32 v0, 63, v0","s_lshr_b32 s13, s2, 2","s_and_b32 s14, s2, 3","v_readfirstlane_b32 s12, v1",
       f"s_mul_i32 s15, s13, {PT}",f"s_add_u32 s15, s15, {hex(PART)}","s_mul_i32 s16, s14, 10240","s_lshl_b32 s17, s12, 11","s_add_u32 s16, s16, s17","s_add_u32 s16, s16, s15",
       "v_lshlrev_b32 v2, 4, v0","s_mov_b32 s6, 0x10000000","s_mov_b32 s7, 0x20000","s_mov_b32 s10, 2949120","s_mov_b32 s11, 0x20000","s_waitcnt lgkmcnt(0)"]
    for ks in range(4):
        p+=[f"buffer_load_dwordx4 v[{8+8*ks}:{11+8*ks}], v2, s[4:7], s16 offen",f"buffer_load_dwordx4 v[{12+8*ks}:{15+8*ks}], v2, s[4:7], s16 offen offset:1024",f"s_add_u32 s16, s16, {64*PT}"]
    p+=["s_and_b32 s18, s14, 1","s_mul_i32 s18, s18, 5","s_add_u32 s18, s18, s12","s_lshl_b32 s19, s18, 9","s_add_u32 s19, s19, s15","s_add_u32 s19, s19, 40960","v_lshlrev_b32 v3, 3, v0"]
    for ks in range(4): p+=[f"buffer_load_dwordx2 v[{40+2*ks}:{41+2*ks}], v3, s[4:7], s19 offen",f"s_add_u32 s19, s19, {64*PT}"]
    p+=["s_bfe_u32 s20, s13, 0x30002","s_mul_i32 s20, s20, 368640","s_lshr_b32 s21, s13, 5","s_mul_i32 s21, s21, 1280","s_add_u32 s20, s20, s21","s_and_b32 s21, s13, 3","s_mul_i32 s21, s21, 320","s_add_u32 s20, s20, s21",
        "s_mul_i32 s21, s14, 81920","s_add_u32 s21, s21, s20","s_lshl_b32 s22, s12, 6","s_add_u32 s21, s21, s22",
        "v_and_b32 v4, 31, v0","v_mul_u32_u24 v4, 0xa00, v4","v_lshrrev_b32 v5, 5, v0","v_lshl_add_u32 v4, v5, 4, v4",
        "s_lshl_b32 s22, s18, 5","s_add_u32 s22, s22, s20","s_add_u32 s22, s22, 327680",
        "v_and_b32 v5, 15, v0","v_mul_u32_u24 v5, 0xa00, v5","v_lshrrev_b32 v6, 4, v0","v_lshl_add_u32 v5, v6, 3, v5"]
    def summ(b,st,j):
        o=[f"v_lshlrev_b32 v6, 16, v{b+j}",f"v_and_b32 v7, 0xffff0000, v{b+j}"]
        for ks in range(1,4): r=b+st*ks+j; o+=[f"v_lshlrev_b32 v1, 16, v{r}",f"v_and_b32 v{r}, 0xffff0000, v{r}","v_add_f32 v6, v6, v1",f"v_add_f32 v7, v7, v{r}"]
        return o+[f"v_cvt_pk_bf16_f32 v{b+j}, v6, v7"]
    for u in range(2):
        for j in range(4): p+=summ(8+4*u,8,j)
        p.append(f"buffer_store_dwordx4 v[{8+4*u}:{11+4*u}], v4, s[8:11], s21 offen offset:{32*u}")
    p+=["s_cmp_ge_u32 s14, 2","s_cbranch_scc1 L_end2"]+summ(40,2,0)+summ(40,2,1)+["buffer_store_dwordx2 v[40:41], v5, s[8:11], s22 offen"]
    return [x.txt for x in finalize([I(x) for x in p])]+["L_end2:","s_endpgm"]

ref=open(f"cdna_kernels/{NAME}.s.ref").read().split("\n")
hdr=[x for x in ref if x.startswith(";") and "@launch" not in x and "Override" not in x and "grid=ceil" not in x]
o=hdr+[f"; @launch kernel={NAME}_kernel grid=(256,1,1) block=(256,1,1) lds=163840","; @launch kernel=reduce_kernel grid=(256,1,1) block=(320,1,1) lds=0",'.amdgcn_target "amdgcn-amd-amdhsa--gfx950"',".text"]
for nm,body in ((NAME+"_kernel",k1()),("reduce_kernel",k2())):
    o+=[f".globl {nm}",".p2align 8",f".type {nm},@function",nm+":"]+body
o.append('.section .rodata,"a"')
for nm,nv,ao in ((NAME+"_kernel",512,256),("reduce_kernel",48,48)):
    o+=[".p2align 6",f".amdhsa_kernel {nm}",f"  .amdhsa_next_free_vgpr {nv}","  .amdhsa_next_free_sgpr 102",f"  .amdhsa_accum_offset {ao}","  .amdhsa_group_segment_fixed_size 0",
        "  .amdhsa_kernarg_size 104","  .amdhsa_user_sgpr_count 2","  .amdhsa_user_sgpr_kernarg_segment_ptr 1","  .amdhsa_system_sgpr_workgroup_id_x 1",".end_amdhsa_kernel"]
open(sys.argv[1],"w").write("\n".join(o)+"\n")
```

```python
import sys, numpy as np
from asmlib import *
from vexpr import Ctx, E, SV
NAME="concat_heads__gqa_block_cached__gqa_block_cached__near_ridge"
OPT=dict(ts=0, LA=200, ntw=0, ntx=0, kill="", dcost=8, pf=1, bsc=1, dsp=50, pubh=1, use="3.4.6.8.10.12", ph=6, pub2=0, pol2=2, pk=1, krot=0, osc=1)
for a in sys.argv[2:]:
    k,v=a.split("="); OPT[k]=int(v) if v.lstrip("-").isdigit() else v
M32="v_mfma_f32_32x32x16_bf16"; M16="v_mfma_f32_16x16x32_bf16"; M16S="v_mfma_f32_16x16x16_bf16"
K0,K1,V0,V1=0,24576,49152,73728; GB=98304; G=[GB,GB+21504,GB+43008]; SP=162816
OITEM=55296; PART=32<<20; PT=46080
_v=[0]
def va(n,al=1):
    _v[0]=(_v[0]+al-1)//al*al; r=f"v{_v[0]}"; _v[0]+=n; return r
Q=va(48,4); QX=va(24,4); SA=va(16,4); SB=va(16,4); SX=va(4,4); NM=va(16,4); NX=va(4,4)
PA=va(28,4); PB=va(52,4)
dK=[va(1) for _ in range(6)]; dV=[va(1) for _ in range(3)]
rK=[va(1) for _ in range(4)]; rKx=[va(1) for _ in range(2)]; rV=[va(1) for _ in range(2)]; rVx=[va(1) for _ in range(4)]
dW=[va(1) for _ in range(3)]; dX=[va(1) for _ in range(3)]
rW=[va(1) for _ in range(2)]; rWx=[va(1) for _ in range(3)]; rX=[va(1) for _ in range(2)]; rXx=va(1)
dO=dW+dX[:2]; rO=rW[0]; rOx=rWx
vM=va(1); vE=va(1); LA_=va(1,2); LB_=va(1); LX=va(1,2); TM=va(1); T2=va(1); T3=va(1); TMX=va(1); VP=va(1); T4=va(1); T5=va(1)
assert _v[0]<=256,_v
O="a0"; OX="a96"; GA="a144"; GX="a240"
BSET=[[off(PB,4*k) for k in range(6)],[off(PB,24+4*k) for k in range(6)],[off(PB,48)]+["a224","a228","a232","a236","a252"]]
sK,sV,sWq,sX,sWo,sWS,sDB="s[4:7]","s[8:11]","s[12:15]","s[16:19]","s[20:23]","s[24:27]","s[28:31]"
CSC=hex(int(np.float32(192**-0.5*np.log2(np.e)).view(np.uint32)))
def srd(pre,r,base,adds,size):
    if adds: pre+= [I(f"s_add_u32 s{r}, s{base}, {adds}"),I(f"s_addc_u32 s{r+1}, s{base+1}, 0"),I(f"s_sub_u32 s{r+2}, {hex(size)}, {adds}")]
    else: pre+=[I(f"s_mov_b32 s{r}, s{base}"),I(f"s_mov_b32 s{r+1}, s{base+1}"),I(f"s_mov_b32 s{r+2}, {hex(size)}")]
    pre.append(I(f"s_mov_b32 s{r+3}, 0x20000"))
TS=[0]
def ts(nm=None):
    if not OPT["ts"] or (nm and nm not in str(OPT.get("tsl","h0.h10.h19.h27.h35.h39.h47.h55.h58")).split(".")): return []
    k=TS[0]; TS[0]+=1; assert k<16
    return [I(f"s_memtime s[{64+2*k}:{65+2*k}]")]

def k1():
    pre=[I("s_cmp_ge_u32 s2, 0x100"),I("s_cbranch_scc1 L_end")]+ts()
    if OPT["pf"]:
        pre+=[I("s_getpc_b64 s[4:5]"),Label("L_pc"),I("s_lshr_b32 s3, s2, 3"),I("s_lshl_b32 s3, s3, 12"),I(f"v_lshl_add_u32 {SX}, v0, 4, s3"),I(f"v_min_u32 {SX}, L_last-L_pc-16, {SX}"),
              I(f"global_load_dwordx4 {T(SX,4)}, {SX}, s[4:5]")]
    if OPT.get("rot"): pre+=[I("s_lshl_b32 s3, s2, 5"),I("s_lshr_b32 s2, s2, 3"),I("s_or_b32 s2, s2, s3"),I("s_and_b32 s2, s2, 255")]
    pre+=[I("s_load_dwordx8 s[40:47], s[0:1], 0"),I("s_load_dwordx2 s[48:49], s[0:1], 32"),
          I("s_load_dwordx2 s[50:51], s[0:1], 40"),I("s_load_dwordx4 s[52:55], s[0:1], 48"),I("s_load_dwordx4 s[56:59], s[0:1], 64"),
          I("s_load_dwordx2 s[60:61], s[0:1], 88"),I("s_load_dwordx2 s[62:63], s[0:1], 96")]
    pre+=[I(x) for x in ["v_lshrrev_b32 v1, 6, v0","s_and_b32 s97, s2, 3","s_bfe_u32 s96, s2, 0x10002","s_bfe_u32 s98, s2, 0x30003","s_lshr_b32 s99, s2, 6",
          "v_readfirstlane_b32 s32, v1","s_lshl_b32 s100, s97, 2","s_add_u32 s100, s100, s99",
          "s_mul_i32 s37, s98, 5","s_lshr_b32 s37, s37, 1","s_mul_i32 s101, s99, 5","s_add_u32 s37, s37, s101",
          "s_cmp_ge_u32 s37, 20","s_cselect_b32 s101, 20, 0","s_sub_u32 s37, s37, s101","s_lshl_b32 s37, s37, 6",
          "s_mul_i32 s33, s32, 6144","s_mul_i32 s34, s32, 3072","s_lshl_b32 s35, s32, 11","s_mul_i32 s36, s32, 5120",
          ]]; pre0=pre; pre=[I(x) for x in ["s_waitcnt lgkmcnt(0)","s_cmp_eq_u32 s96, 0","s_cselect_b64 s[40:41], s[40:41], s[50:51]","s_cselect_b64 s[42:43], s[42:43], s[52:53]",
          "s_cselect_b64 s[44:45], s[44:45], s[54:55]","s_cselect_b64 s[46:47], s[46:47], s[56:57]","s_cselect_b64 s[48:49], s[48:49], s[58:59]",
          "s_mul_i32 s101, s100, 384"]]
    srd(pre,12,46,"s101",7864320)
    pre.append(I("s_mul_i32 s101, s98, 184320")); srd(pre,16,40,"s101",1474560)
    pre+=[I("s_lshl_b32 s101, s98, 5"),I("s_add_u32 s101, s101, s100"),I("s_mul_i32 s101, s101, 196608")]
    srd(pre,4,42,"s101",50331648); srd(pre,8,44,"s101",50331648)
    pre.append(I("s_mul_i32 s101, s99, 320")); srd(pre,20,48,"s101",7864320)
    srd(pre,24,62,None,268435456); srd(pre,28,60,None,256); pre.append(I("s_mov_b32 s63, s2"))
    pre+=[I(x) for x in ["s_lshl_b32 s101, s32, 4","s_mov_b64 s[42:43], 0xffff","s_lshl_b64 s[42:43], s[42:43], s101"]]
    tid=np.arange(256); w_=tid>>6; l_=tid&63
    SV.update(s32=w_,s33=w_*6144,s35=w_*2048)
    c=Ctx(R(Q,40)); chk=[]
    l=(E(c,"v0",tid,False)&63).keep(); w=E(c,"v1",w_,False)
    wv=(w+0|0).keep()
    c.free=[r for r in c.free if r not in("v0","v1")]
    def div(q,n): return (q*(2731 if n==24 else 3277))>>16
    for j in range(3):
        q=(l+64*j|0).keep(); r=div(q,24).keep(); pc=(q-r*24); sw=((r&2)<<1)|((wv&1)<<1)
        e=(((wv<<3)+r)*12288+((pc^sw)<<4)-1024*j).to(dW[j]); q.drop(); r.drop()
        qq=64*j+l_; rr_=8*w_+qq//24; chk.append((e,rr_*12288+((qq%24)^((((rr_>>1)&1)<<2)|(((rr_>>3)&1)<<1)))*16-1024*j))
    xc=(((l&3)^((l>>4)&3))<<4).keep()
    e=(((wv<<5)+(l>>2))*1280+xc).to(dX[0]); chk.append((e,(32*w_+(l_>>2))*1280+((l_&3)^((l_>>4)&3))*16))
    (e+(16*1280-1024)).to(dX[1]); ((l>>2)*1280+xc+128*1280).to(dX[2]); xc.drop()
    pre1=c.out; c.out=[]
    rr=((l>>2)&3).keep(); cc=(l&3).keep(); h=(l>>5).keep(); g=(l>>4).keep(); Gg=(g&1).keep(); q16=(l&15).keep(); r32=(l&31).keep()
    rr_,cc_,h_,g_,G_=(l_>>2)&3,l_&3,l_>>5,l_>>4,(l_>>4)&1
    for d in range(2):
        e=(((h<<3)+rr)*384+(((((Gg<<1)+(cc&1))+4*d)^(((rr&2)<<1)|(h<<1)))<<4)+((cc>>1)<<3)+GB).to(rW[d])
        chk.append((e,GB+(8*h_+rr_)*384+((4*d+2*G_+(cc_&1))^(4*(rr_>>1)|2*h_))*16+8*(cc_>>1)))
    for e_ in range(3):
        e=(((g<<3)+rr)*384+(((((wv*3+e_)<<1)+(cc>>1))^(((rr&2)<<1)|(Gg<<1)))<<4)+((cc&1)<<3)+GB).to(rWx[e_])
        chk.append((e,GB+(8*g_+rr_)*384+((2*(3*w_+e_)+(cc_>>1))^(4*(rr_>>1)|2*G_))*16+8*(cc_&1)))
    for u in range(2):
        e=((r32<<6)+(((h+2*u|0)^((r32>>2)&3))<<4)+"s35"+(GB+12288)).to(rX[u])
        chk.append((e,GB+12288+2048*w_+(l_&31)*64+((2*u+h_)^(((l_&31)>>2)&3))*16))
    e=((q16<<6)+((g^(q16>>2))<<4)+(GB+20480)).to(rXx); chk.append((e,GB+20480+(l_&15)*64+(g_^((l_&15)>>2))*16))
    gs=rW+rWx+rX+[rXx]; alt={GB:gs,0:R(SA,8),V0:R(off(PB,36),8)}
    for b in (0,V0):
        for a,x in zip(gs,alt[b]): c.out.append(I(f"v_subrev_u32 {x}, {hex(GB-b)}, {a}"))
    pre2=c.out; c.out=[]
    for j in range(6):
        r=div(l+64*j|0,24); e=(((l^((r>>1)&7))<<4)+"s33"+(4096 if j>=4 else 0)).to(dK[j])
        chk.append((e,16*(l_^((((64*j+l_)//24)>>1)&7))+6144*w_+(4096 if j>=4 else 0)))
    for j in range(3):
        r=div(l+64*j|0,24).keep(); e=(((l^(((r&2)<<1)|((r&4)>>1)))<<4)+"s33").to(dV[j]); r.drop()
        r_=(64*j+l_)//24; chk.append((e,16*(l_^((((r_>>1)&1)<<2)|(((r_>>2)&1)<<1)))+6144*w_))
    for m in range(4):
        e=(r32*384+(((h+2*m|0)^((r32>>1)&7))<<4)).to(rK[m]); chk.append((e,(l_&31)*384+((2*m+h_)^(((l_&31)>>1)&7))*16))
    for t in range(2):
        e=(q16*384+(((g+4*t|0)^(q16>>1))<<4)+"s33").to(rKx[t]); chk.append((e,(16*w_+(l_&15))*384+((4*t+g_)^((l_&15)>>1))*16))
    for d in range(2):
        e=(((h<<2)+rr)*384+(((((Gg<<1)+(cc>>1))+4*d)^(((rr&2)<<1)|(h<<1)))<<4)+((cc&1)<<3)+V0).to(rV[d])
        chk.append((e,V0+(4*h_+rr_)*384+((4*d+2*G_+(cc_>>1))^(4*(rr_>>1)|2*h_))*16+8*(cc_&1)))
    for k in range(4):
        e=(((g<<2)+rr)*384+((((cc>>1)+2*k)^(((rr&2)<<1)|(Gg<<1)))<<4)+((cc&1)<<3)+"s33"+V0).to(rVx[k])
        chk.append((e,V0+(16*w_+4*g_+rr_)*384+((2*k+(cc_>>1))^(4*(rr_>>1)|2*G_))*16+8*(cc_&1)))
    (wv*12288+(l<<4)).to(vM); ((l<<4)+49152).to(vE)
    pre3=c.out
    for e,ref in chk: assert (e.val==(ref&0xffffffff)).all(), e.reg
    pre3+=[I(x) for x in [["s_mov_b32 s56, 0","s_add_u32 s56, s98, s99","s_add_u32 s56, s63, s98","s_mov_b32 s56, s63"][OPT["krot"]],f"s_mov_b32 s2, {CSC}","s_mov_b64 s[44:45], 1","s_lshl_b32 s101, s96, 3","s_add_u32 s101, s101, s98","s_lshl_b32 s57, s101, 2","s_add_u32 s57, s57, s97","s_lshl_b32 s57, s57, 2",
        "s_lshl_b32 s58, s97, 4","s_add_u32 s58, s58, s101","s_lshl_b32 s58, s58, 2","s_add_u32 s58, s58, s99",f"s_mul_i32 s58, s58, {PT}",f"s_add_u32 s58, s58, {hex(PART)}",
        "s_lshl_b32 s101, s101, 5"]]
    for i in range(4):
        pre3+=[I(x) for x in [f"s_add_u32 s40, s99, {i}","s_and_b32 s40, s40, 3","s_lshl_b32 s41, s97, 2","s_add_u32 s40, s40, s41",f"s_mul_i32 s{48+i}, s40, {192*1280}",
               "s_add_u32 s40, s40, s101",f"s_mul_i32 s{52+i}, s40, {OITEM}"]]
    for e_ in range(3):
        pre3+=[I(x) for x in ["s_mul_i32 s40, s32, 3",f"s_add_u32 s40, s40, {e_}","s_and_b32 s41, s40, 1","s_lshr_b32 s40, s40, 1","s_lshl_b32 s40, s40, 10","s_lshl_b32 s41, s41, 3",f"s_add_u32 s{60+e_}, s40, s41"]]
    HO=R(off(PB,24),9)
    def wo_regs():
        c=Ctx(R(QX,24)); ck=[]; dO=HO[:5]; rO=HO[5]; rOx=HO[6:9]
        l=((E(c,vE,16*l_+49152,False)>>4)&63).keep(); wv=((l&0)+"s32").keep()
        for j in range(5):
            q=(l+64*j|0).keep(); r=div(q,20).keep(); pc=q-r*20
            e=(((wv<<4)+r)*1280+((pc^((r&4)>>1))<<4)-1024*(j%4)).to(dO[j]); q.drop(); r.drop()
            qq=64*j+l_; r_=qq//20; ck.append((e,(16*w_+r_)*1280+((qq%20)^(((r_>>2)&1)<<1))*16-1024*(j%4)))
        rr=((l>>2)&3).keep(); h=(l>>5).keep(); g=(l>>4).keep(); Gg=(g&1).keep()
        e=(((h<<2)+rr)*320+((((Gg<<1)+(l&1))^(h<<1))<<4)+((l&2)<<2)+GB).to(rO); ck.append((e,GB+(4*h_+rr_)*320+((2*G_+(cc_&1))^(2*h_))*16+8*(cc_>>1)))
        base=(((g<<2)+rr)*320+((l&1)<<3)+GB).keep(); lo=((l>>1)&1).keep()
        for e_ in range(3):
            blk=wv+4*e_ if e_<2 else (wv&1)+8
            e=(base+((((blk<<1)+lo)^(Gg<<1))<<4)).to(rOx[e_]); b_=w_+4*e_ if e_<2 else (w_&1)+8
            ck.append((e,GB+(4*g_+rr_)*320+((2*b_+(cc_>>1))^(2*G_))*16+8*(cc_&1)))
        for e,ref in ck: assert (e.val==(ref&0xffffffff)).all(), e.reg
        return c.out
    def D(txt,tag): i=I(txt,tag); i.cost=OPT["dcost"]; return i
    def m0(s,c_): return I(f"s_add_u32 m0, {s}, {hex(c_)}")
    ntw=" nt" if OPT["ntw"] else ""; ntx=" nt" if OPT["ntx"] else ""
    bsc=["",' sc1',' nt',' sc0'][OPT["bsc"]]
    def sof(t,c_):
        if not OPT["krot"]: return [I(f"s_mov_b32 s39, {hex((t//16)*3145728+((t%16)//2)*24576+c_)}")]
        return [I(f"s_add_u32 s39, s56, {(t%16)//2}"),I("s_and_b32 s39, s39, 7"),I("s_mul_i32 s39, s39, 24576")]+([I("s_add_u32 s39, s39, 3145728")] if t>=16 else [])
    osc=["",' sc1',' sc1 nt',' nt',' sc0 sc1'][OPT["osc"]]
    def dmaT(t):
        so=(t//16)*3145728+((t%16)//2)*24576; slot=[K0,V0,K1,V1][t%4]; tg=("T",t); o=[]
        for j in range(6):
            p=[]
            if t%2==0:
                if j in(0,4): p.append(m0("s33",slot+(4096 if j else 0)))
                if j==0: p+=sof(t,0)
                p.append(D(f"buffer_load_dwordx4 {dK[j]}, {sK}, s39 offen offset:{1024*(j%4)} nt lds",tg))
            else:
                if j in(0,3): p+=[m0("s33",slot+1024*j)]+(sof(t,0) if j==0 else [I("s_add_u32 s39, s39, 0xc00")])
                p.append(D(f"buffer_load_dwordx4 {dV[j%3]}, {sV}, s39 offen offset:{1024*(j%3)} nt lds",tg))
            o.append(p)
        return o
    def dmaQ(rnd,s,slot):
        tg=("GQ",rnd,s); o=[]
        p=[m0("s34",slot)]
        if not(rnd==0 and s==0): p+=[I("s_add_u32 s37, s37, 64"),I("s_cmp_eq_u32 s37, 0x500"),I("s_cselect_b32 s37, 0, s37")]
        p+=[I("s_mul_i32 s38, s37, 6144")]+([I("s_add_u32 s38, s38, 6144")] if rnd else [])
        for j in range(3):
            o.append(p+[D(f"buffer_load_dwordx4 {dW[j]}, {sWq}, s38 offen offset:{1024*j}{ntw} lds",tg)]); p=[]
        o.append([m0("s35",slot+12288),D(f"buffer_load_dwordx4 {dX[0]}, {sX}, s37 offen{ntx} lds",tg)])
        o.append([D(f"buffer_load_dwordx4 {dX[1]}, {sX}, s37 offen offset:1024{ntx} lds",tg)])
        o.append([I(f"s_mov_b32 m0, {hex(slot+20480)}"),I("s_mov_b64 exec, s[42:43]"),D(f"buffer_load_dwordx4 {dX[2]}, {sX}, s37 offen{ntx} lds",tg),I("s_mov_b64 exec, -1")])
        return o
    USE=[int(x) for x in str(OPT["use"]).split(".")]; ND=len(USE); KT=ND+3; XB=4096
    def oslot(k): return G[(k+1)%3] if k<KT else [XB,V0,K1][k-KT] if k<KT+3 else oslot(k-6)
    def bset(k): return BSET[k%3] if (k<12 or k>20) else [off(Q,16*(k-12)+4*u) for u in range(4)]+[off(QX,8*(k-12)+4*t) for t in range(2)] if k<15 else [f"a{24*(k-15)+4*u}" for u in range(6)]
    def dmaO(k):
        slot=oslot(k); tg=("GO",k); o=[]; i=(k%12)//3
        for j in range(5):
            p=[]
            if j in(0,4): p.append(m0("s36",slot+(4096 if j else 0)))
            if j==0: p.append(I(f"s_add_u32 s38, s{48+i}, {hex((k//12)*16*192*1280+(k%3)*64*1280)}"))
            o.append(p+[D(f"buffer_load_dwordx4 {dO[j]}, {sWo}, s38 offen offset:{1024*(j%4)}{ntw} lds",tg)])
        return o
    def ldB(k):
        i=(k%12)//3; b=bset(k); base=(k//12)*16*OITEM; o=[]
        for u in range(6):
            p=[]
            if u==0: p.append(I(f"s_add_u32 s59, s{52+i}, {hex(base+(k%3)*4096)}"))
            if u==4: p.append(I(f"s_add_u32 s59, s{52+i}, {hex(base+(k%3)*2048)}"))
            o.append(p+[D(f"buffer_load_dwordx4 {T(b[u],4)}, {vM if u<4 else vE}, {sWS}, s59 offen offset:{1024*(u%4)}{bsc}",("B",k))])
        return o
    def f128(a,imm,pool="A"): return Frag(4,lambda r:[I(f"ds_read_b128 {T(r,4)}, {a} offset:{imm}")],pool)
    def ftr(a0,i0,a1,i1): return Frag(4,lambda r:[I(f"ds_read_b64_tr_b16 {T(r,2)}, {a0} offset:{i0}"),I(f"ds_read_b64_tr_b16 {T(off(r,2),2)}, {a1} offset:{i1}")])
    def mQK(it,t,c0):
        sl=24576*(it%2); S=[SA,SB][t]
        return [M(M32,S,f128(rK[ks%4],sl+t*12288+(ks>>2)*128),off(Q,4*ks),c0 if ks==0 else None) for ks in range(12)]
    def mQKx(it,c0): return [M(M16,SX,f128(rKx[t&1],24576*(it%2)+(t>>1)*128),off(QX,4*t),c0 if t==0 else None) for t in range(6)]
    def mPV(it,t,dbm=False):
        sl=24576*(it%2); S=[SA,SB][t]; o=[]
        for u,db in (sorted([(u,db) for u in range(2) for db in range(6)],key=lambda x:(x[1],x[0])) if dbm else [(u,db) for u in range(2) for db in range(6)]):
            im=sl+(db>>1)*128+(32*t+16*u)*384
            o.append(M(M32,off(O,16*db),ftr(rV[db&1],im,rV[db&1],im+8*384),off(S,8*u),"0" if(it==0 and t==0 and u==0) else None))
        return o
    def mPVx(it):
        o=[]
        for b2 in range(6):
            b=2*b2; im=24576*(it%2)+(b>>2)*128; f=ftr(rVx[b&3],im,rVx[(b+1)&3],im)
            for e_ in range(2): o.append(M(M16S,off(OX,4*(b+e_)),(f,2*e_),SX,"0" if it==0 else None,na=2))
        return o
    def mGQ(s,slot):
        b=GB if slot>=GB else V0 if slot>=V0 else 0; a=alt[b]; sl=slot-b
        xf=[f128(a[5+u],sl,"B") for u in range(2)]; xe=f128(a[7],sl,"B")
        mn=[[M(M32,off(GA,16*db),ftr(a[db&1],sl+(db>>1)*128+16*u*384,a[db&1],sl+(db>>1)*128+(16*u+4)*384),xf[u],"0" if(s==0 and u==0) else None) for db in range(6)] for u in range(2)]
        ex=[M(M16,off(GX,4*e_),ftr(a[2+e_],sl,a[2+e_],sl+4*384),xe,"0" if s==0 else None) for e_ in range(3)]
        return mn,ex
    def mGO(k):
        sl=oslot(k); b=bset(k); rO,*rOx=(rW[:1]+rWx) if sl>=GB else rK; sl-=GB if sl>=GB else XB
        mn=[[M(M32,off(GA,16*cb),ftr(rO,sl+64*cb+16*u*320,rO,sl+64*cb+(16*u+8)*320),b[u],"0" if(k==0 and u==0) else None) for cb in range(5)] for u in range(4)]
        ex=[M(M16,off(GX,4*e_),ftr(rOx[e_],sl+32*t*320,rOx[e_],sl+(32*t+16)*320),b[4+t],"0" if(k==0 and t==0) else None) for t in range(2) for e_ in range(3)]
        return mn,ex
    def flat(me):
        mn,ex=me; o=[m for r in mn for m in r]; n=len(o); st=n//len(ex); res=[]
        for i,m in enumerate(o):
            res.append(m)
            if i%st==st-1 and ex[i//st:i//st+1]: res.append(ex[i//st])
        for x in ex:
            if x not in res: res.append(x)
        return res
    def ilv(a,b):
        o=[]
        for i in range(max(len(a),len(b))): o+=a[i:i+1]+b[i:i+1]
        return o
    HN=[0]; spine=[]; rs=[]; fills=[]; tagf={}; stubs=[]
    def half(ms,waits=(),deps=(),dma=(),lg=False,bar=True,extra=(),dlo=1,dsp=None):
        st=len(spine); extra=list(extra)+ts(f"h{HN[0]}"); HN[0]+=1
        if bar:
            dp=list(deps)
            for t in waits: dp+=tagf.get(t,[])
            rs.append(([WaitVM(waits)]+([I("s_waitcnt lgkmcnt(0)")] if lg else [])+[I("s_barrier")]+list(extra),st,dp))
        for m in ms:
            m.i=len(spine); spine.append(m)
            for f in m.fr:
                if not getattr(f,"q",0): f.q=1; rs.append((f,m.i))
        en=len(spine); n=len(dma)
        if n:
            span=max((en-st-dlo-3)*(dsp or OPT['dsp'])//100,1)
            for k,p in enumerate(dma):
                lo=min(st+dlo+k*span//n,en-2); f=Fill(p,lo,min(lo+3,en-1),"dma"); fills.append(f)
                for x in p:
                    if x.tag is not None and x.kind=="vmem": tagf.setdefault(x.tag,[]).append(f)
        return st,en
    def F(txts,lo,hi,ch):
        f=Fill([I(t) if isinstance(t,str) else t for t in (txts if isinstance(txts,list) else [txts])],lo,hi,ch); fills.append(f); return f
    def maxch(S,n,tm):
        o=[f"v_max3_f32 {tm}, {S}, {off(S,1)}, {off(S,2)}"]
        for k in range(3,n-1,2): o.append(f"v_max3_f32 {tm}, {tm}, {off(S,k)}, {off(S,k+1)}")
        o.append(f"v_max_f32 {tm}, {tm}, {off(S,n-1)}"); return o
    def red(x,t,op,n16):
        o=[f"v_mov_b32 {t}, {x}","s_nop 0",f"v_permlane32_swap_b32 {x}, {t}",f"{op} {x}, {x}, {t}"]
        if n16: o+=[f"v_mov_b32 {t}, {x}","s_nop 0",f"v_permlane16_swap_b32 {x}, {t}",f"{op} {x}, {x}, {t}"]
        return o
    def check(S,n,tm,sub,lo,hi,ch):
        for x in maxch(S,n,tm): F(x,lo,hi,ch)
        k=len(stubs); stubs.append((k,sub))
        F([f"v_cmp_lt_f32 vcc, 0x41000000, {tm}",f"s_cbranch_vccnz L_fb{k}",Label(f"L_rt{k}")],lo,hi,ch)
    def init(S,n,tm,t,N,lo,hi,hi2,ch):
        for x in maxch(S,n,tm): F(x,lo,hi,ch)
        F(red(tm,t,"v_max_f32",n==4),lo,hi,ch)
        for k in range(n): F(f"v_sub_f32 {off(N,k)}, 0, {tm}",lo,hi,ch)
        for k in range(n): F(f"v_sub_f32 {off(S,k)}, {off(S,k)}, {tm}",lo,hi2,ch)
    def smx(S,n,lo,his,ch,first,la,lb):
        for k in range(0,n,2):
            hi=his[k//8]; a,b=off(S,k),off(S,k+1)
            F([f"v_exp_f32 {a}, {a}",f"v_exp_f32 {b}, {b}"],lo,hi,ch)
            z=first and k==0
            F([f"v_add_f32 {la}, {'0' if z else la}, {a}",f"v_add_f32 {lb}, {'0' if (z and la!=lb) else lb}, {b}",f"v_cvt_pk_bf16_f32 {off(S,(k//8)*8+(k%8)//2)}, {a}, {b}"],lo,hi,ch)
    tg=[0]
    def cvt8(src,n,mul,dst,lo,hi,ch):
        t=off(SA,8*(tg[0]%4)) if ch!="ep" else [SB,off(SB,8),NM,off(NM,8)][tg[0]%4]; tg[0]+=1
        for k in range(0,n,4): F([f"v_accvgpr_read_b32 {off(t,k+j)}, {off(src,k+j)}" for j in range(4)],lo,hi,ch)
        if mul:
            pm="s[2:3]" if mul==CSC else T(mul,2)
            for k in range(0,n,4): F([f"v_pk_mul_f32 {T(off(t,k+j),2)}, {T(off(t,k+j),2)}, {pm} op_sel_hi:[1,0]" for j in (0,2)] if OPT["pk"] else [f"v_mul_f32 {off(t,k+j)}, {mul}, {off(t,k+j)}" for j in range(4)],lo,hi,ch)
        d=dst or t
        F([f"v_cvt_pk_bf16_f32 {off(d,j)}, {off(t,2*j)}, {off(t,2*j+1)}" for j in range(n//2)],lo,hi,ch)
        return d
    def qlast(rnd,waits,dma,deps=(),sl=(G[1],G[2])):
        (a,ax),(b,bx)=mGQ(18,sl[0]),mGQ(19,sl[1]); ms=ilv(ax,a[0][:3])+ilv(bx,a[0][3:])
        for db in range(6): ms+=[a[1][db],b[0][db],b[1][db]]
        st,en=half(ms,waits,deps,dma)
        lo=bx[2].i+1; ws=[]
        F([f"v_lshrrev_b32 {T4}, 4, {vE}",f"v_and_b32 {T5}, 15, {T4}",f"v_mul_u32_u24 {T5}, 0x190, {T5}",f"v_bfe_u32 {T4}, {T4}, 4, 2"],st,en,"ep")
        F([f"v_lshl_add_u32 {T3}, {T4}, 4, {T5}",f"v_lshl_add_u32 {T4}, {T4}, 3, {T5}","s_mul_i32 s40, s32, 96",f"v_add_u32 {T4}, s40, {T4}",f"v_add_u32 {T3}, {hex(G[0])}, {T3}",f"v_add_u32 {T4}, {hex(G[0])}, {T4}"],st,en,"ep")
        for e_ in range(3):
            d=cvt8(off(GX,4*e_),4,CSC,None,lo,en,"ep"); ws.append(F(f"ds_write_b64 {T4}, {T(d,2)} offset:{32*e_}",lo,en,"ep"))
        for db in range(6):
            for u in range(2): cvt8(off(GA,16*db+8*u),8,CSC,off(Q,8*db+4*u),b[1][db].i+1,en+2*db+u,"ep")
        return ws
    def att(rnd,gl,dm,ws,wt):
        for it in range(8):
            n=2*it; t0=16*rnd+n; g=gl.get(n,[])
            a=mQK(it,0,"0" if it==0 else NM); b=mQK(it,1,NM); x=mQKx(it,"0" if it==0 else NX)
            ms=a+g[:3]+b+ilv(x,g[3:9])+g[9:] if g else a+x+b
            st,en=half(ms,[("T",t0)]+wt.get(n,[]),ws if it==0 else (),dm.get(n,[]),lg=it==0)
            if it==0:
                for t in range(6): F(f"ds_read_b128 {T(off(QX,4*t),4)}, {T3} offset:{64*t}",st,x[0].i-2,"qx")
            pa,pb,px=mPV(it,0),mPV(it,1,it==7),mPVx(it); g=gl.get(n+1,[])
            st2,en2=half(pa+g+pb+px if it<7 else pa+g+px+pb,[("T",t0+1)]+wt.get(n+1,[]),(),dm.get(n+1,[]))
            if it==0:
                init(SA,16,TM,T2,NM,a[-1].i+1,b[0].i,pa[0].i,"sm"); init(SX,4,TMX,T5,NX,x[-1].i+1,px[0].i,px[0].i,"sx")
            else:
                check(SA,16,TM,"L_FA",a[-1].i+1,b[0].i,"sm"); check(SX,4,TMX,"L_FX",x[-1].i+1,px[0].i,"sx")
            smx(SA,16,a[-1].i+1,[pa[0].i,pa[6].i],"sm",it==0,LA_,LB_)
            check(SB,16,TM,"L_FB",b[-1].i+1,pa[0].i,"sm")
            smx(SB,16,b[-1].i+1,[pb[0].i,pb[6 if it<7 else 1].i],"sm",False,LA_,LB_)
            smx(SX,4,x[-1].i+1,[px[0].i],"sx",it==0,LX,LX)
        lo=px[0].i
        F(red(LX,T5,"v_add_f32",True),lo,en2,"sx")
        F([f"v_bfe_u32 {T4}, {vE}, 4, 4",f"v_lshlrev_b32 {T4}, 3, {T4}",f"v_add_u32 {T4}, {hex(SP)}, {T4}","s_lshl_b32 s40, s32, 7",f"v_add_u32 {T5}, s40, {T4}",f"v_mov_b32 {off(NX,1)}, {LX}"],lo,en2,"sx")
        wml=F(f"ds_write_b64 {T5}, {T(NX,2)}",lo,en2,"sx")
        F([f"v_add_f32 {LA_}, {LA_}, {LB_}"]+red(LA_,T2,"v_add_f32",False)+[f"v_rcp_f32 {LA_}, {LA_}"],pb[1].i,en2,"sm")
        return wml,pb
    def epi(rnd,wml,pb,g3,dm3,wt3):
        ob=rnd*16*OITEM; st0,en0=half(g3[0],wt3[0],[wml],dm3[0],lg=True)
        m4=R(QX,8);
        F([f"ds_read_b64 {T(m4[2*k],2)}, {T4} offset:{128*k}" for k in range(4)],st0-1,en0,"ex")
        F([f"v_min3_f32 {T5}, {m4[0]}, {m4[2]}, {m4[4]}",f"v_min_f32 {T5}, {T5}, {m4[6]}"]+[f"v_sub_f32 {m4[2*k]}, {T5}, {m4[2*k]}" for k in range(4)]+[f"v_sub_f32 {T5}, {T5}, {NX}"],st0,en0,"ex")
        F([f"v_exp_f32 {m4[2*k]}, {m4[2*k]}" for k in range(4)]+[f"v_exp_f32 {T5}, {T5}"],st0,en0,"ex")
        F([f"v_mul_f32 {LX}, {m4[0]}, {m4[1]}"]+[f"v_fmac_f32 {LX}, {m4[2*k]}, {m4[2*k+1]}" for k in range(1,4)]+[f"v_rcp_f32 {LX}, {LX}",f"v_lshrrev_b32 {T4}, 1, {vE}",f"v_mul_f32 {LX}, {LX}, {T5}",
           f"v_add_u32 {T4}, {hex(V1-24576)}, {T4}",f"v_add_u32 {T5}, s33, {T4}","s_mul_i32 s40, s32, 1536",f"v_add_u32 {T4}, s40, {T4}"],st0,en0,"ex")
        wr=[]
        for b in range(12):
            d=cvt8(off(OX,4*b),4,LX,None,st0,en0,"ex"); wr.append(F(f"ds_write_b64 {T5}, {T(d,2)} offset:{512*b}",st0,en0,"ex"))
        sts=[]; sf=[]
        def mainc(ss,lo,hi):
            for s in ss:
                cvt8(off(O,8*s),8,LA_,off(Q,4*s),lo,hi,"ex")
                x=[f"s_add_u32 s41, s52, {hex(ob+(s//4)*4096)}",I(f"buffer_store_dwordx4 {T(off(Q,4*s),4)}, {vM}, {sWS}, s41 offen offset:{1024*(s%4)}{osc}",("O",rnd))]
                if rnd: sf.append(F(x,lo,hi,"ex"))
                else: sts.append(x)
        n1=len(g3[1]); nm0=OPT.get("nm0",2)
        mainc(range(nm0),st0,en0+n1-8)
        st1,en1=half(g3[1],wt3[1],wr,dm3[1],lg=True)
        rds=[]; xw=[]
        if rnd: F([f"v_subrev_u32 {x}, {hex(GB-XB)}, {a}" for a,x in zip(rW[:1]+rWx,rK)]+[f"v_subrev_u32 {T3}, {hex(49152-45056)}, {vE}"],st1,en1-8,"ex")
        for e_ in range(3):
            rds.append(F([f"ds_read_b64 {T(m4[2*k],2)}, {T4} offset:{6144*k+512*e_}" for k in range(4)],st1-1,en1-6,"ex"))
            a=R(off(QX,8),8)
            for k in range(4):
                for j in range(2):
                    x,y=(a[2*j],a[2*j+1]) if k==0 else (a[4],a[5])
                    F([f"v_lshlrev_b32 {x}, 16, {m4[2*k+j]}",f"v_and_b32 {y}, 0xffff0000, {m4[2*k+j]}"]+([f"v_add_f32 {a[2*j]}, {a[2*j]}, {x}",f"v_add_f32 {a[2*j+1]}, {a[2*j+1]}, {y}"] if k else []),st1,en1-4,"ex")
            d=off(QX,16+2*e_)
            F([f"v_cvt_pk_bf16_f32 {d}, {a[0]}, {a[1]}",f"v_cvt_pk_bf16_f32 {off(d,1)}, {a[2]}, {a[3]}"],st1,en1-2,"ex")
            x=[f"s_add_u32 s40, s52, s{60+e_}",f"s_add_u32 s40, s40, {hex(ob)}",I(f"buffer_store_dwordx2 {T(d,2)}, {vE}, {sWS}, s40 offen{osc}",("O",rnd))]
            if rnd:
                sf.append(F(x,st1,en1-2,"ex"))
                xw.append(F([f"s_cmp_ge_u32 s{60+e_}, 0x1000","s_cselect_b32 s40, 0x5000, 0",f"s_add_u32 s40, s40, s{60+e_}",f"v_add_u32 {T2}, s40, {T3}",f"ds_write_b64 {T2}, {T(d,2)}"],st1,en1-1,"ex"))
            else: sts.append(x)
        st2,en2=half(g3[2],wt3[2],rds+xw,dm3[2],lg=bool(rnd),dsp=25)
        if rnd: F([f"ds_read_b128 {T(off(QX,4*t),4)}, {T3} offset:{1024*t+(20480 if t>=4 else 0)}" for t in range(6)],st2,en2-2,"xr")
        mainc(range(nm0,12),st1,en2-2)
        for x in sts: sf.append(F(x,st2+8,en2-1,"ex"))
        return sf,st2,en2
    NEARLY=0
    def publish(rnd,lo,hi,ch):
        return F([WaitVM([("O",rnd)]),f"v_mov_b32 {T2}, {hex(1<<(16*rnd))}","s_mov_b64 exec, s[44:45]",I(f"buffer_atomic_add {T2}, off, {sDB}, s57 sc1",("A",rnd)),"s_mov_b64 exec, -1"],lo,hi,ch)
    def poll(rnd,lo,lo2,hi):
        F(I(f"buffer_load_dword {VP}, off, {sDB}, s57 sc1",("P",rnd)),lo,lo+1,"dma")
        F([f"v_readfirstlane_b32 s40, {VP}",f"s_bfe_u32 s40, s40, {hex(0x100000|16*rnd)}","s_cmp_lt_u32 s40, 16",f"s_cbranch_scc1 L_sp{rnd}",Label(f"L_pr{rnd}")],lo2,hi,"dma")
    hs=[G[0],G[1],G[2],K0,K1,V0,V1]; slot={s:hs[s%7] for s in range(17)}; slot.update({17:K1,18:V1,19:G[1]})
    prog=pre0+pre1+pre
    for s in range(7):
        for p in dmaQ(0,s,slot[s]): prog+=p
        tagf[("GQ",0,s)]=[]
        if s==1: prog+=pre2
    prog+=pre3+wo_regs()
    for s in range(18):
        d=dmaQ(0,s+6,slot[s+6]) if 1<=s<=10 else {11:lambda:dmaT(0),12:lambda:dmaQ(0,17,K1),13:lambda:dmaT(1),14:lambda:dmaQ(0,18,V1),16:lambda:dmaQ(0,19,G[1])}.get(s,list)()
        half(flat(mGQ(s,slot[s])),[("GQ",0,s)],(),d)
    ws=qlast(0,[("GQ",0,18),("GQ",0,19)],dmaT(2),sl=(V1,G[1]))
    gl={n:flat(mGQ(n-1,G[n%3])) for n in range(1,16)}
    dm={n:(dmaQ(1,0,G[1]) if n==0 else [])+dmaQ(1,n+1,G[(n+2)%3])+dmaT(n+3) for n in range(16)}
    wml,pb=att(0,gl,dm,ws,{n:[("GQ",1,n-1)] for n in range(1,16)})
    sf,st2,en2=epi(0,wml,pb,[flat(mGQ(15+k,G[(16+k)%3])) for k in range(3)],[dmaQ(1,17,G[0]),dmaQ(1,18,G[1]),dmaQ(1,19,G[2])+dmaT(19)],[[("GQ",1,15+k)] for k in range(3)])
    ws=qlast(1,[("GQ",1,18),("GQ",1,19)],[],sf)
    en=len(spine)
    F([f"v_mov_b32 {a}, {b}" for a,b in zip(dO,HO[:5])],en-20,en-2,"dma")
    def pubI(rnd): return [WaitVM([("O",rnd)]),I(f"v_mov_b32 {VP}, {hex(1<<(16*rnd))}"),I("s_mov_b64 exec, s[44:45]"),I(f"buffer_atomic_add {VP}, off, {sDB}, s57 sc1",("A",rnd)),I("s_mov_b64 exec, -1")]
    def polI(rnd): return [I(f"buffer_load_dword {VP}, off, {sDB}, s57 sc1",("P",rnd))]
    def chkI(rnd): return [I(f"v_readfirstlane_b32 s40, {VP}"),I(f"s_bfe_u32 s40, s40, {hex(0x100000|16*rnd)}"),I("s_cmp_lt_u32 s40, 16"),I(f"s_cbranch_scc1 L_sp{rnd}"),Label(f"L_pr{rnd}")]
    pos=USE+[16,17,18]+list(range(19,19+24-KT)); PH=OPT["ph"]; P0=OPT["pubh"]; P2=19+OPT["pub2"]; C2=19+OPT["pol2"]+1
    NH=pos[-1]+1; dB={n:[] for n in range(NH)}; dW_={n:[] for n in range(NH)}; dT={n:(dmaT(16+n+3) if 1<=n<=12 else []) for n in range(NH)}
    for k in range(24):
        nw=[0,0,1][k] if k<3 else pos[k-3]+1 if k<KT else 13+k-KT if k<KT+3 else pos[k-6]+1
        dW_[nw]+=dmaO(k)
        if k<3: nb=P0+1
        elif k<12: nb=max(pos[k-3]+1,PH)
        elif k<15: continue
        else: nb=max(C2+(k-15)//2,pos[k-12]+1 if k>20 else 0)
        assert nb<pos[k] and nw<pos[k],(k,nb,nw)
        dB[nb]+=ldB(k)
    dB[PH][0]=chkI(0)+dB[PH][0]; dB[C2][0]=chkI(1)+dB[C2][0]
    dm={n:dB[n]+dW_[n]+dT[n] for n in range(NH)}
    dm[P0]+=[pubI(0)]; dm[PH-1]=[polI(0)]+dm[PH-1]; dm[P2]+=[pubI(1)]; dm[C2-1]+=[polI(1)]
    assert P0<PH-1 and P2<C2-1
    gl={n:flat(mGO(k)) for k,n in enumerate(USE)}
    i0=len(spine)
    F([f"v_mov_b32 {a}, {b}" for a,b in zip([rO]+rOx,HO[5:])],i0-1,i0+20,"mv")
    wml,pb=att(1,gl,dm,ws,{n:[("GO",k)] for k,n in enumerate(USE)})
    sf,st2,en2=epi(1,wml,pb,[flat(mGO(ND+k)) for k in range(3)],[dm[16+k] for k in range(3)],[[("GO",ND+k)] for k in range(3)])
    for k in range(KT,24):
        mn,ex=mGO(k)
        ms=flat((mn,ex)) if k<23 else ilv(ex,mn[0]+[mn[1][0]])+[mn[2][0],mn[3][0]]+[mn[u][cb] for cb in range(1,5) for u in range(1,4)]
        st,en=half(ms,[("GO",k)],sf if k==KT else (),dm[pos[k]],dsp=100 if pos[k] in (P2,C2-1) else None)
    F(["s_lshl_b32 s40, s32, 11","s_mul_i32 s41, s32, 12288",f"v_subrev_u32 {T4}, s40, {vM}",f"v_subrev_u32 {T5}, s41, {vM}",f"v_lshrrev_b32 {T5}, 1, {T5}","s_lshl_b32 s40, s32, 9","s_add_u32 s60, s58, s40",
       "s_and_b32 s40, s40, 0x200","s_add_u32 s62, s58, s40"],st,en,"fin")
    for e_ in range(3):
        d=cvt8(off(GX,4*e_),4,None,None,ex[-1].i+1,en,"fin")
        F([f"s_add_u32 s40, {'s62' if e_==2 else 's60'}, {hex(40960+2048*e_)}",f"buffer_store_dwordx2 {T(d,2)}, {T5}, {sWS}, s40 offen"],ex[-1].i+1,en,"fin")
    for s in range(10):
        lo=min(mn[3][s//2].i+1,en-1); d=cvt8(off(GA,8*s),8,None,None,lo,en,"fin")
        F([f"s_add_u32 s40, s58, {hex((s//4)*4096)}",f"buffer_store_dwordx4 {T(d,4)}, {T4}, {sWS}, s40 offen offset:{1024*(s%4)}"],lo,en,"fin")
    rs.sort(key=lambda x:x[1])
    pa_=Pool(PA,7)
    if OPT.get("bigp"): pa_.free+=[off(PB,24+4*k) for k in range(6)]
    prog+=schedule(spine,rs,fills,{"A":pa_,"B":Pool(PB,6)},LA=OPT["LA"])
    kl=OPT["kill"]
    if kl:
        km={"T":"T","GQ":"G","GO":"W","B":"B","O":"S","A":"P","P":"P"}
        prog=[x for x in prog if not(x.kind=="vmem" and x.tag and km[x.tag[0]] in kl) and not(x.txt.startswith("s_cbranch_vccnz")) and not("P" in kl and "L_sp" in x.txt)]
        if "C" in kl:
            k0=[i for i,x in enumerate(prog) if x.txt=="s_barrier"][0]
            def cf(x):
                if x.txt.startswith("ds_read_b128") or "tr_b16" in x.txt:
                    p=x.txt.split(); return I(f"{p[0]} {p[1]} {vE if 'b128' in p[0] else VP} offset:{int(p[3][7:])&0x3c00}")
                return x
            prog=prog[:k0]+[I(f"v_lshrrev_b32 {VP}, 1, {vE}")]+[cf(x) for x in prog[k0:]]
        if "Z" in kl: prog=[I("s_mov_b32 s39, 0") if x.txt.startswith("s_mov_b32 s39") else x for x in prog]
        if "Y" in kl: prog=[I(x.txt.replace(" lds","").replace("dwordx4 ","dwordx4 "+T(off(PB,48),4)+", "),None) if (x.kind=="vmem" and x.txt.endswith("lds")) else x for x in prog]
        if "N" in kl: OPT["nolg"]=1
        if "R" in kl: prog=[x for x in prog if x.txt!="s_barrier"]
        if "V" in kl: prog=[x for x in prog if not x.txt.startswith(("v_exp","v_max3","v_add_f32","v_cvt"))]
        if "L" in kl: prog=[x for x in prog if not x.txt.startswith("ds_read")]
    prog+=ts()
    if OPT["ts"]:
        prog+=[I("s_waitcnt lgkmcnt(0)"),I("s_lshl_b32 s40, s63, 8"),I(f"s_add_u32 s40, s40, {hex(64<<20)}"),I("s_lshl_b32 s41, s32, 6"),I("s_add_u32 s40, s40, s41"),I("s_mov_b64 exec, 1")]
        for k in range(TS[0]): prog+=[I(f"v_mov_b32 {T2}, s{64+2*k}"),I(f"buffer_store_dword {T2}, off, {sWS}, s40 offset:{4*k}")]
    prog+=[Label("L_end"),I("s_endpgm")]
    st={}; out=finalize(prog,age=OPT.get("age",96),stats=st); print("k1",st,"mfma",len(spine),"cyc",sum(m.dur for m in spine),file=sys.stderr)
    txt=[x.txt for x in out]
    if OPT.get("nolg"): k0=txt.index("s_barrier"); txt=txt[:k0]+[x for x in txt[k0:-40] if "lgkmcnt" not in x]+txt[-40:]
    for k,sub in stubs: txt+=[f"L_fb{k}:",f"s_call_b64 s[46:47], {sub}",f"s_branch L_rt{k}"]
    for nm,S,N,n,tm,t,acc,na,ls in (("L_FA",SA,NM,16,TM,T2,O,96,[LA_,LB_]),("L_FB",SB,NM,16,TM,T2,O,96,[LA_,LB_]),("L_FX",SX,NX,4,TMX,T5,OX,48,[LX])):
        p=["s_nop 15","s_nop 15"]+red(tm,t,"v_max_f32",n==4)+[f"v_max_f32 {tm}, 0, {tm}"]
        p+=[f"v_sub_f32 {off(S,k)}, {off(S,k)}, {tm}" for k in range(n)]+[f"v_sub_f32 {off(N,k)}, {off(N,k)}, {tm}" for k in range(n)]
        p+=[f"v_exp_f32 {tm}, -{tm}","s_nop 1"]+[f"v_mul_f32 {x}, {x}, {tm}" for x in ls]
        for k in range(na): p+=[f"v_accvgpr_read_b32 {t}, {off(acc,k)}",f"v_mul_f32 {t}, {t}, {tm}",f"v_accvgpr_write_b32 {off(acc,k)}, {t}"]
        if nm=="L_FB":
            for r in R(SA,4)+R(off(SA,8),4):
                p+=[f"v_lshlrev_b32 {t}, 16, {r}",f"v_and_b32 {r}, 0xffff0000, {r}",f"v_mul_f32 {t}, {t}, {tm}",f"v_mul_f32 {r}, {r}, {tm}",f"v_cvt_pk_bf16_f32 {r}, {t}, {r}"]
        txt+=[nm+":"]+[x.txt for x in finalize([I(x) for x in p])]+["s_nop 3","s_setpc_b64 s[46:47]"]
    for r in range(2):
        txt+=[f"L_sp{r}:","s_sleep 2",f"buffer_load_dword {VP}, off, {sDB}, s57 sc1","s_waitcnt vmcnt(0)",f"v_readfirstlane_b32 s40, {VP}","s_nop 0",f"s_bfe_u32 s40, s40, {hex(0x100000|16*r)}","s_cmp_lt_u32 s40, 16",f"s_cbranch_scc1 L_sp{r}",f"s_branch L_pr{r}"]
    return txt+["L_last:"]

def k2():
    p=["s_cmp_ge_u32 s2, 0x100","s_cbranch_scc1 L_end2","s_load_dwordx2 s[4:5], s[0:1], 96","s_load_dwordx2 s[8:9], s[0:1], 80",
       "v_lshrrev_b32 v1, 6, v0","v_and_b32 v0, 63, v0","s_lshr_b32 s13, s2, 2","s_and_b32 s14, s2, 3","v_readfirstlane_b32 s12, v1",
       f"s_mul_i32 s15, s13, {PT}",f"s_add_u32 s15, s15, {hex(PART)}","s_mul_i32 s16, s14, 10240","s_lshl_b32 s17, s12, 11","s_add_u32 s16, s16, s17","s_add_u32 s16, s16, s15",
       "v_lshlrev_b32 v2, 4, v0","s_mov_b32 s6, 0x10000000","s_mov_b32 s7, 0x20000","s_mov_b32 s10, 2949120","s_mov_b32 s11, 0x20000","s_waitcnt lgkmcnt(0)"]
    for ks in range(4):
        p+=[f"buffer_load_dwordx4 v[{8+8*ks}:{11+8*ks}], v2, s[4:7], s16 offen",f"buffer_load_dwordx4 v[{12+8*ks}:{15+8*ks}], v2, s[4:7], s16 offen offset:1024",f"s_add_u32 s16, s16, {64*PT}"]
    p+=["s_and_b32 s18, s14, 1","s_mul_i32 s18, s18, 5","s_add_u32 s18, s18, s12","s_lshl_b32 s19, s18, 9","s_add_u32 s19, s19, s15","s_add_u32 s19, s19, 40960","v_lshlrev_b32 v3, 3, v0"]
    for ks in range(4): p+=[f"buffer_load_dwordx2 v[{40+2*ks}:{41+2*ks}], v3, s[4:7], s19 offen",f"s_add_u32 s19, s19, {64*PT}"]
    p+=["s_bfe_u32 s20, s13, 0x30002","s_mul_i32 s20, s20, 368640","s_lshr_b32 s21, s13, 5","s_mul_i32 s21, s21, 1280","s_add_u32 s20, s20, s21","s_and_b32 s21, s13, 3","s_mul_i32 s21, s21, 320","s_add_u32 s20, s20, s21",
        "s_mul_i32 s21, s14, 81920","s_add_u32 s21, s21, s20","s_lshl_b32 s22, s12, 6","s_add_u32 s21, s21, s22",
        "v_and_b32 v4, 31, v0","v_mul_u32_u24 v4, 0xa00, v4","v_lshrrev_b32 v5, 5, v0","v_lshl_add_u32 v4, v5, 4, v4",
        "s_lshl_b32 s22, s18, 5","s_add_u32 s22, s22, s20","s_add_u32 s22, s22, 327680",
        "v_and_b32 v5, 15, v0","v_mul_u32_u24 v5, 0xa00, v5","v_lshrrev_b32 v6, 4, v0","v_lshl_add_u32 v5, v6, 3, v5"]
    def summ(b,st,j):
        o=[f"v_lshlrev_b32 v6, 16, v{b+j}",f"v_and_b32 v7, 0xffff0000, v{b+j}"]
        for ks in range(1,4): r=b+st*ks+j; o+=[f"v_lshlrev_b32 v1, 16, v{r}",f"v_and_b32 v{r}, 0xffff0000, v{r}","v_add_f32 v6, v6, v1",f"v_add_f32 v7, v7, v{r}"]
        return o+[f"v_cvt_pk_bf16_f32 v{b+j}, v6, v7"]
    for u in range(2):
        for j in range(4): p+=summ(8+4*u,8,j)
        p.append(f"buffer_store_dwordx4 v[{8+4*u}:{11+4*u}], v4, s[8:11], s21 offen offset:{32*u}")
    p+=["s_cmp_ge_u32 s14, 2","s_cbranch_scc1 L_end2"]+summ(40,2,0)+summ(40,2,1)+["buffer_store_dwordx2 v[40:41], v5, s[8:11], s22 offen"]
    return [x.txt for x in finalize([I(x) for x in p])]+["L_end2:","s_endpgm"]

ref=open(f"cdna_kernels/{NAME}.s.ref").read().split("\n")
hdr=[x for x in ref if x.startswith(";") and "@launch" not in x and "Override" not in x and "grid=ceil" not in x]
o=hdr+[f"; @launch kernel={NAME}_kernel grid=(256,1,1) block=(256,1,1) lds=163840","; @launch kernel=reduce_kernel grid=(256,1,1) block=(320,1,1) lds=0",'.amdgcn_target "amdgcn-amd-amdhsa--gfx950"',".text"]
for nm,body in ((NAME+"_kernel",k1()),("reduce_kernel",k2())):
    o+=[f".globl {nm}",".p2align 8",f".type {nm},@function",nm+":"]+body
o.append('.section .rodata,"a"')
for nm,nv,ao in ((NAME+"_kernel",512,256),("reduce_kernel",48,48)):
    o+=[".p2align 6",f".amdhsa_kernel {nm}",f"  .amdhsa_next_free_vgpr {nv}","  .amdhsa_next_free_sgpr 102",f"  .amdhsa_accum_offset {ao}","  .amdhsa_group_segment_fixed_size 0",
        "  .amdhsa_kernarg_size 104","  .amdhsa_user_sgpr_count 2","  .amdhsa_user_sgpr_kernarg_segment_ptr 1","  .amdhsa_system_sgpr_workgroup_id_x 1",".end_amdhsa_kernel"]
open(sys.argv[1],"w").write("\n".join(o)+"\n")
```

```python
import sys, numpy as np
from asmlib import *
from vexpr import Ctx, E, SV
NAME="concat_heads__gqa_block_cached__gqa_block_cached__near_ridge"
OPT=dict(ts=0, LA=200, ntw=0, ntx=0, kill="", dcost=8, pf=1, bsc=1, dsp=50, pubh=2, use="5.6.8.10.12.14", nb="3.4.6.8.10.12.13.14.15", nw="0.2.5.7.9.11.13.14.15", nb2="0.0.0.1.1.2.3.4.5", pub2=2, pol2=4, pk=1, ssp=8, ssp1=6, krot=0, osc=1)
for a in sys.argv[2:]:
    k,v=a.split("="); OPT[k]=int(v) if v.lstrip("-").isdigit() else v
M32="v_mfma_f32_32x32x16_bf16"; M16="v_mfma_f32_16x16x32_bf16"; M16S="v_mfma_f32_16x16x16_bf16"
K0,K1,V0,V1=0,24576,49152,73728; GB=98304; G=[GB,GB+21504,GB+43008]; SP=162816
OITEM=55296; PART=32<<20; PT=46080
_v=[0]
def va(n,al=1):
    _v[0]=(_v[0]+al-1)//al*al; r=f"v{_v[0]}"; _v[0]+=n; return r
Q=va(48,4); QX=va(24,4); SA=va(16,4); SB=va(16,4); SX=va(4,4); NM=va(16,4); NX=va(4,4)
PA=va(28,4); PB=va(52,4)
dK=[va(1) for _ in range(6)]; dV=[va(1) for _ in range(3)]
rK=[va(1) for _ in range(4)]; rKx=[va(1) for _ in range(2)]; rV=[va(1) for _ in range(2)]; rVx=[va(1) for _ in range(4)]
dW=[va(1) for _ in range(3)]; dX=[va(1) for _ in range(3)]
rW=[va(1) for _ in range(2)]; rWx=[va(1) for _ in range(3)]; rX=[va(1) for _ in range(2)]; rXx=va(1)
dO=dW+dX[:2]; rO=rW[0]; rOx=rWx
vM=va(1); vE=va(1); LA_=va(1,2); LB_=va(1); LX=va(1,2); TM=va(1); T2=va(1); T3=va(1); TMX=va(1); VP=va(1); T4=va(1); T5=va(1)
assert _v[0]<=256,_v
O="a0"; OX="a96"; GA="a144"; GX="a240"
BSET=[[off(PB,4*k) for k in range(6)],[off(PB,24+4*k) for k in range(6)],[off(PB,48)]+["a224","a228","a232","a236","a252"]]
sK,sV,sWq,sX,sWo,sWS,sDB="s[4:7]","s[8:11]","s[12:15]","s[16:19]","s[20:23]","s[24:27]","s[28:31]"
CSC=hex(int(np.float32(192**-0.5*np.log2(np.e)).view(np.uint32)))
def srd(pre,r,base,adds,size):
    if adds: pre+= [I(f"s_add_u32 s{r}, s{base}, {adds}"),I(f"s_addc_u32 s{r+1}, s{base+1}, 0"),I(f"s_sub_u32 s{r+2}, {hex(size)}, {adds}")]
    else: pre+=[I(f"s_mov_b32 s{r}, s{base}"),I(f"s_mov_b32 s{r+1}, s{base+1}"),I(f"s_mov_b32 s{r+2}, {hex(size)}")]
    pre.append(I(f"s_mov_b32 s{r+3}, 0x20000"))
TS=[0]
def ts(nm=None):
    if not OPT["ts"] or (nm and nm not in str(OPT.get("tsl","h0.h10.h19.h27.h35.h39.h47.h55.h58")).split(".")): return []
    k=TS[0]; TS[0]+=1; assert k<16
    return [I(f"s_memtime s[{64+2*k}:{65+2*k}]")]

def k1():
    pre=[I("s_cmp_ge_u32 s2, 0x100"),I("s_cbranch_scc1 L_end")]+ts()
    if OPT["pf"]:
        pre+=[I("s_getpc_b64 s[4:5]"),Label("L_pc"),I("s_lshr_b32 s3, s2, 3"),I("s_lshl_b32 s3, s3, 12"),I(f"v_lshl_add_u32 {SX}, v0, 4, s3"),I(f"v_min_u32 {SX}, L_last-L_pc-16, {SX}"),
              I(f"global_load_dwordx4 {T(SX,4)}, {SX}, s[4:5]")]
    if OPT.get("rot"): pre+=[I("s_lshl_b32 s3, s2, 5"),I("s_lshr_b32 s2, s2, 3"),I("s_or_b32 s2, s2, s3"),I("s_and_b32 s2, s2, 255")]
    pre+=[I("s_load_dwordx8 s[40:47], s[0:1], 0"),I("s_load_dwordx2 s[48:49], s[0:1], 32"),
          I("s_load_dwordx2 s[50:51], s[0:1], 40"),I("s_load_dwordx4 s[52:55], s[0:1], 48"),I("s_load_dwordx4 s[56:59], s[0:1], 64"),
          I("s_load_dwordx2 s[60:61], s[0:1], 88"),I("s_load_dwordx2 s[62:63], s[0:1], 96")]
    pre+=[I(x) for x in ["v_lshrrev_b32 v1, 6, v0","s_and_b32 s97, s2, 3","s_bfe_u32 s96, s2, 0x10002","s_bfe_u32 s98, s2, 0x30003","s_lshr_b32 s99, s2, 6",
          "v_readfirstlane_b32 s32, v1","s_lshl_b32 s100, s97, 2","s_add_u32 s100, s100, s99",
          "s_mul_i32 s37, s98, 5","s_lshr_b32 s37, s37, 1","s_mul_i32 s101, s99, 5","s_add_u32 s37, s37, s101",
          "s_cmp_ge_u32 s37, 20","s_cselect_b32 s101, 20, 0","s_sub_u32 s37, s37, s101","s_lshl_b32 s37, s37, 6",
          "s_mul_i32 s33, s32, 6144","s_mul_i32 s34, s32, 3072","s_lshl_b32 s35, s32, 11","s_mul_i32 s36, s32, 5120",
          ]]; pre0=pre; pre=[I(x) for x in ["s_waitcnt lgkmcnt(0)","s_cmp_eq_u32 s96, 0","s_cselect_b64 s[40:41], s[40:41], s[50:51]","s_cselect_b64 s[42:43], s[42:43], s[52:53]",
          "s_cselect_b64 s[44:45], s[44:45], s[54:55]","s_cselect_b64 s[46:47], s[46:47], s[56:57]","s_cselect_b64 s[48:49], s[48:49], s[58:59]",
          "s_mul_i32 s101, s100, 384"]]
    srd(pre,12,46,"s101",7864320)
    pre.append(I("s_mul_i32 s101, s98, 184320")); srd(pre,16,40,"s101",1474560)
    pre+=[I("s_lshl_b32 s101, s98, 5"),I("s_add_u32 s101, s101, s100"),I("s_mul_i32 s101, s101, 196608")]
    srd(pre,4,42,"s101",50331648); srd(pre,8,44,"s101",50331648)
    pre.append(I("s_mul_i32 s101, s99, 320")); srd(pre,20,48,"s101",7864320)
    srd(pre,24,62,None,268435456); srd(pre,28,60,None,256); pre.append(I("s_mov_b32 s63, s2"))
    pre+=[I(x) for x in ["s_lshl_b32 s101, s32, 4","s_mov_b64 s[42:43], 0xffff","s_lshl_b64 s[42:43], s[42:43], s101"]]
    tid=np.arange(256); w_=tid>>6; l_=tid&63
    SV.update(s32=w_,s33=w_*6144,s35=w_*2048)
    c=Ctx(R(Q,40)); chk=[]
    l=(E(c,"v0",tid,False)&63).keep(); w=E(c,"v1",w_,False)
    wv=(w+0|0).keep()
    c.free=[r for r in c.free if r not in("v0","v1")]
    def div(q,n): return (q*(2731 if n==24 else 3277))>>16
    for j in range(3):
        q=(l+64*j|0).keep(); r=div(q,24).keep(); pc=(q-r*24); sw=((r&2)<<1)|((wv&1)<<1)
        e=(((wv<<3)+r)*12288+((pc^sw)<<4)-1024*j).to(dW[j]); q.drop(); r.drop()
        qq=64*j+l_; rr_=8*w_+qq//24; chk.append((e,rr_*12288+((qq%24)^((((rr_>>1)&1)<<2)|(((rr_>>3)&1)<<1)))*16-1024*j))
    xc=(((l&3)^((l>>4)&3))<<4).keep()
    e=(((wv<<5)+(l>>2))*1280+xc).to(dX[0]); chk.append((e,(32*w_+(l_>>2))*1280+((l_&3)^((l_>>4)&3))*16))
    (e+(16*1280-1024)).to(dX[1]); ((l>>2)*1280+xc+128*1280).to(dX[2]); xc.drop()
    pre1=c.out; c.out=[]
    rr=((l>>2)&3).keep(); cc=(l&3).keep(); h=(l>>5).keep(); g=(l>>4).keep(); Gg=(g&1).keep(); q16=(l&15).keep(); r32=(l&31).keep()
    rr_,cc_,h_,g_,G_=(l_>>2)&3,l_&3,l_>>5,l_>>4,(l_>>4)&1
    for d in range(2):
        e=(((h<<3)+rr)*384+(((((Gg<<1)+(cc&1))+4*d)^(((rr&2)<<1)|(h<<1)))<<4)+((cc>>1)<<3)+GB).to(rW[d])
        chk.append((e,GB+(8*h_+rr_)*384+((4*d+2*G_+(cc_&1))^(4*(rr_>>1)|2*h_))*16+8*(cc_>>1)))
    for e_ in range(3):
        e=(((g<<3)+rr)*384+(((((wv*3+e_)<<1)+(cc>>1))^(((rr&2)<<1)|(Gg<<1)))<<4)+((cc&1)<<3)+GB).to(rWx[e_])
        chk.append((e,GB+(8*g_+rr_)*384+((2*(3*w_+e_)+(cc_>>1))^(4*(rr_>>1)|2*G_))*16+8*(cc_&1)))
    for u in range(2):
        e=((r32<<6)+(((h+2*u|0)^((r32>>2)&3))<<4)+"s35"+(GB+12288)).to(rX[u])
        chk.append((e,GB+12288+2048*w_+(l_&31)*64+((2*u+h_)^(((l_&31)>>2)&3))*16))
    e=((q16<<6)+((g^(q16>>2))<<4)+(GB+20480)).to(rXx); chk.append((e,GB+20480+(l_&15)*64+(g_^((l_&15)>>2))*16))
    gs=rW+rWx+rX+[rXx]; alt={GB:gs,0:R(SA,8),V0:R(off(PB,36),8)}
    for b in (0,V0):
        for a,x in zip(gs,alt[b]): c.out.append(I(f"v_subrev_u32 {x}, {hex(GB-b)}, {a}"))
    pre2=c.out; c.out=[]
    for j in range(6):
        r=div(l+64*j|0,24); e=(((l^((r>>1)&7))<<4)+"s33"+(4096 if j>=4 else 0)).to(dK[j])
        chk.append((e,16*(l_^((((64*j+l_)//24)>>1)&7))+6144*w_+(4096 if j>=4 else 0)))
    for j in range(3):
        r=div(l+64*j|0,24).keep(); e=(((l^(((r&2)<<1)|((r&4)>>1)))<<4)+"s33").to(dV[j]); r.drop()
        r_=(64*j+l_)//24; chk.append((e,16*(l_^((((r_>>1)&1)<<2)|(((r_>>2)&1)<<1)))+6144*w_))
    for m in range(4):
        e=(r32*384+(((h+2*m|0)^((r32>>1)&7))<<4)).to(rK[m]); chk.append((e,(l_&31)*384+((2*m+h_)^(((l_&31)>>1)&7))*16))
    for t in range(2):
        e=(q16*384+(((g+4*t|0)^(q16>>1))<<4)+"s33").to(rKx[t]); chk.append((e,(16*w_+(l_&15))*384+((4*t+g_)^((l_&15)>>1))*16))
    for d in range(2):
        e=(((h<<2)+rr)*384+(((((Gg<<1)+(cc>>1))+4*d)^(((rr&2)<<1)|(h<<1)))<<4)+((cc&1)<<3)+V0).to(rV[d])
        chk.append((e,V0+(4*h_+rr_)*384+((4*d+2*G_+(cc_>>1))^(4*(rr_>>1)|2*h_))*16+8*(cc_&1)))
    for k in range(4):
        e=(((g<<2)+rr)*384+((((cc>>1)+2*k)^(((rr&2)<<1)|(Gg<<1)))<<4)+((cc&1)<<3)+"s33"+V0).to(rVx[k])
        chk.append((e,V0+(16*w_+4*g_+rr_)*384+((2*k+(cc_>>1))^(4*(rr_>>1)|2*G_))*16+8*(cc_&1)))
    (wv*12288+(l<<4)).to(vM); ((l<<4)+49152).to(vE)
    pre3=c.out
    for e,ref in chk: assert (e.val==(ref&0xffffffff)).all(), e.reg
    pre3+=[I(x) for x in [["s_mov_b32 s56, 0","s_add_u32 s56, s98, s99","s_add_u32 s56, s63, s98","s_mov_b32 s56, s63"][OPT["krot"]],f"s_mov_b32 s2, {CSC}","s_mov_b64 s[44:45], 1","s_lshl_b32 s101, s96, 3","s_add_u32 s101, s101, s98","s_lshl_b32 s57, s101, 2","s_add_u32 s57, s57, s97","s_lshl_b32 s57, s57, 2","s_add_u32 s28, s28, s57","s_addc_u32 s29, s29, 0","s_cmp_eq_u32 s32, 0","s_cselect_b32 s30, 4, 0","s_mov_b32 s57, s30",
        "s_lshl_b32 s58, s97, 4","s_add_u32 s58, s58, s101","s_lshl_b32 s58, s58, 2","s_add_u32 s58, s58, s99",f"s_mul_i32 s58, s58, {PT}",f"s_add_u32 s58, s58, {hex(PART)}",
        "s_lshl_b32 s101, s101, 5"]]
    for i in range(4):
        pre3+=[I(x) for x in [f"s_add_u32 s40, s99, {i}","s_and_b32 s40, s40, 3","s_lshl_b32 s41, s97, 2","s_add_u32 s40, s40, s41",f"s_mul_i32 s{48+i}, s40, {192*1280}",
               "s_add_u32 s40, s40, s101",f"s_mul_i32 s{52+i}, s40, {OITEM}"]]
    for e_ in range(3):
        pre3+=[I(x) for x in ["s_mul_i32 s40, s32, 3",f"s_add_u32 s40, s40, {e_}","s_and_b32 s41, s40, 1","s_lshr_b32 s40, s40, 1","s_lshl_b32 s40, s40, 10","s_lshl_b32 s41, s41, 3",f"s_add_u32 s{60+e_}, s40, s41"]]
    HO=R(off(PB,24),9)
    def wo_regs():
        c=Ctx(R(QX,24)); ck=[]; dO=HO[:5]; rO=HO[5]; rOx=HO[6:9]
        l=((E(c,vE,16*l_+49152,False)>>4)&63).keep(); wv=((l&0)+"s32").keep()
        for j in range(5):
            q=(l+64*j|0).keep(); r=div(q,20).keep(); pc=q-r*20
            e=(((wv<<4)+r)*1280+((pc^((r&4)>>1))<<4)-1024*(j%4)).to(dO[j]); q.drop(); r.drop()
            qq=64*j+l_; r_=qq//20; ck.append((e,(16*w_+r_)*1280+((qq%20)^(((r_>>2)&1)<<1))*16-1024*(j%4)))
        rr=((l>>2)&3).keep(); h=(l>>5).keep(); g=(l>>4).keep(); Gg=(g&1).keep()
        e=(((h<<2)+rr)*320+((((Gg<<1)+(l&1))^(h<<1))<<4)+((l&2)<<2)+GB).to(rO); ck.append((e,GB+(4*h_+rr_)*320+((2*G_+(cc_&1))^(2*h_))*16+8*(cc_>>1)))
        base=(((g<<2)+rr)*320+((l&1)<<3)+GB).keep(); lo=((l>>1)&1).keep()
        for e_ in range(3):
            blk=wv+4*e_ if e_<2 else (wv&1)+8
            e=(base+((((blk<<1)+lo)^(Gg<<1))<<4)).to(rOx[e_]); b_=w_+4*e_ if e_<2 else (w_&1)+8
            ck.append((e,GB+(4*g_+rr_)*320+((2*b_+(cc_>>1))^(2*G_))*16+8*(cc_&1)))
        for e,ref in ck: assert (e.val==(ref&0xffffffff)).all(), e.reg
        return c.out
    def D(txt,tag): i=I(txt,tag); i.cost=OPT["dcost"]; return i
    def m0(s,c_): return I(f"s_add_u32 m0, {s}, {hex(c_)}")
    ntw=" nt" if OPT["ntw"] else ""; ntx=" nt" if OPT["ntx"] else ""
    bsc=["",' sc1',' nt',' sc0'][OPT["bsc"]]
    def sof(t,c_):
        if not OPT["krot"]: return [I(f"s_mov_b32 s39, {hex((t//16)*3145728+((t%16)//2)*24576+c_)}")]
        return [I(f"s_add_u32 s39, s56, {(t%16)//2}"),I("s_and_b32 s39, s39, 7"),I("s_mul_i32 s39, s39, 24576")]+([I("s_add_u32 s39, s39, 3145728")] if t>=16 else [])
    osc=["",' sc1',' sc1 nt',' nt',' sc0 sc1'][OPT["osc"]]
    def dmaT(t):
        so=(t//16)*3145728+((t%16)//2)*24576; slot=[K0,V0,K1,V1][t%4]; tg=("T",t); o=[]
        for j in range(6):
            p=[]
            if t%2==0:
                if j in(0,4): p.append(m0("s33",slot+(4096 if j else 0)))
                if j==0: p+=sof(t,0)
                p.append(D(f"buffer_load_dwordx4 {dK[j]}, {sK}, s39 offen offset:{1024*(j%4)} nt lds",tg))
            else:
                if j in(0,3): p+=[m0("s33",slot+1024*j)]+(sof(t,0) if j==0 else [I("s_add_u32 s39, s39, 0xc00")])
                p.append(D(f"buffer_load_dwordx4 {dV[j%3]}, {sV}, s39 offen offset:{1024*(j%3)} nt lds",tg))
            o.append(p)
        return o
    def dmaQ(rnd,s,slot):
        tg=("GQ",rnd,s); o=[]
        p=[m0("s34",slot)]
        if not(rnd==0 and s==0): p+=[I("s_add_u32 s37, s37, 64"),I("s_cmp_eq_u32 s37, 0x500"),I("s_cselect_b32 s37, 0, s37")]
        p+=[I("s_mul_i32 s38, s37, 6144")]+([I("s_add_u32 s38, s38, 6144")] if rnd else [])
        for j in range(3):
            o.append(p+[D(f"buffer_load_dwordx4 {dW[j]}, {sWq}, s38 offen offset:{1024*j}{ntw} lds",tg)]); p=[]
        o.append([m0("s35",slot+12288),D(f"buffer_load_dwordx4 {dX[0]}, {sX}, s37 offen{ntx} lds",tg)])
        o.append([D(f"buffer_load_dwordx4 {dX[1]}, {sX}, s37 offen offset:1024{ntx} lds",tg)])
        o.append([I(f"s_mov_b32 m0, {hex(slot+20480)}"),I("s_mov_b64 exec, s[42:43]"),D(f"buffer_load_dwordx4 {dX[2]}, {sX}, s37 offen{ntx} lds",tg),I("s_mov_b64 exec, -1")])
        return o
    USE=[int(x) for x in str(OPT["use"]).split(".")]; ND=len(USE); KT=ND+3; XB=4096
    def oslot(k): return G[(k+1)%3] if k<KT else [XB,V0,K1][k-KT] if k<KT+3 else oslot(k-6)
    def bset(k): return BSET[k%3] if k<12 else [off(Q,16*(k-12)+4*u) for u in range(4)]+[off(QX,8*(k-12)+4*t) for t in range(2)] if k<15 else [f"a{16*(k-15)+4*u}" for u in range(4)]
    def dmaO(k):
        slot=oslot(k); tg=("GO",k); o=[]; i=(k%12)//3
        for j in range(5):
            p=[]
            if j in(0,4): p.append(m0("s36",slot+(4096 if j else 0)))
            if j==0: p.append(I(f"s_add_u32 s38, s{48+i}, {hex((k//12)*16*192*1280+(k%3)*64*1280)}"))
            o.append(p+[D(f"buffer_load_dwordx4 {dO[j]}, {sWo}, s38 offen offset:{1024*(j%4)}{ntw} lds",tg)])
        return o
    def ldB(k):
        i=(k%12)//3; b=bset(k); base=(k//12)*16*OITEM; o=[]
        for u in range(6 if k<15 else 4):
            p=[]
            if u==0: p.append(I(f"s_add_u32 s59, s{52+i}, {hex(base+(k%3)*4096)}"))
            if u==4: p.append(I(f"s_add_u32 s59, s{52+i}, {hex(base+(k%3)*2048)}"))
            o.append(p+[D(f"buffer_load_dwordx4 {T(b[u],4)}, {vM if u<4 else vE}, {sWS}, s59 offen offset:{1024*(u%4)}{bsc}",("B",k))])
        return o
    def dmaE(i):
        o=[]
        for j in range(2):
            p=[I("s_lshl_b32 s40, s32, 10")]+([I("s_and_b32 s40, s40, 0x400"),I("s_add_u32 s40, s40, 0x1000")] if j else [])
            p+=[m0("s40",V1+6144*(i-1)),I(f"s_add_u32 s40, s40, s{52+i}"),I(f"s_add_u32 s40, s40, {hex(16*OITEM)}"),D(f"buffer_load_dwordx4 {vE}, {sWS}, s40 offen{bsc} lds",("B",100+i))]
            o.append(p)
        return o
    def f128(a,imm,pool="A"): return Frag(4,lambda r:[I(f"ds_read_b128 {T(r,4)}, {a} offset:{imm}")],pool)
    def ftr(a0,i0,a1,i1): return Frag(4,lambda r:[I(f"ds_read_b64_tr_b16 {T(r,2)}, {a0} offset:{i0}"),I(f"ds_read_b64_tr_b16 {T(off(r,2),2)}, {a1} offset:{i1}")])
    def mQK(it,t,c0):
        sl=24576*(it%2); S=[SA,SB][t]
        return [M(M32,S,f128(rK[ks%4],sl+t*12288+(ks>>2)*128),off(Q,4*ks),c0 if ks==0 else None) for ks in range(12)]
    def mQKx(it,c0): return [M(M16,SX,f128(rKx[t&1],24576*(it%2)+(t>>1)*128),off(QX,4*t),c0 if t==0 else None) for t in range(6)]
    def mPV(it,t,dbm=False):
        sl=24576*(it%2); S=[SA,SB][t]; o=[]
        for u,db in (sorted([(u,db) for u in range(2) for db in range(6)],key=lambda x:(x[1],x[0])) if dbm else [(u,db) for u in range(2) for db in range(6)]):
            im=sl+(db>>1)*128+(32*t+16*u)*384
            o.append(M(M32,off(O,16*db),ftr(rV[db&1],im,rV[db&1],im+8*384),off(S,8*u),"0" if(it==0 and t==0 and u==0) else None))
        return o
    def mPVx(it):
        o=[]
        for b2 in range(6):
            b=2*b2; im=24576*(it%2)+(b>>2)*128; f=ftr(rVx[b&3],im,rVx[(b+1)&3],im)
            for e_ in range(2): o.append(M(M16S,off(OX,4*(b+e_)),(f,2*e_),SX,"0" if it==0 else None,na=2))
        return o
    def mGQ(s,slot):
        b=GB if slot>=GB else V0 if slot>=V0 else 0; a=alt[b]; sl=slot-b
        xf=[f128(a[5+u],sl,"B") for u in range(2)]; xe=f128(a[7],sl,"B")
        mn=[[M(M32,off(GA,16*db),ftr(a[db&1],sl+(db>>1)*128+16*u*384,a[db&1],sl+(db>>1)*128+(16*u+4)*384),xf[u],"0" if(s==0 and u==0) else None) for db in range(6)] for u in range(2)]
        ex=[M(M16,off(GX,4*e_),ftr(a[2+e_],sl,a[2+e_],sl+4*384),xe,"0" if s==0 else None) for e_ in range(3)]
        return mn,ex
    def mGO(k):
        sl=oslot(k); b=bset(k); rO,*rOx=(rW[:1]+rWx) if sl>=GB else rK; sl-=GB if sl>=GB else XB
        mn=[[M(M32,off(GA,16*cb),ftr(rO,sl+64*cb+16*u*320,rO,sl+64*cb+(16*u+8)*320),b[u],"0" if(k==0 and u==0) else None) for cb in range(5)] for u in range(4)]
        if k>=15: b=b[:4]+[f128(vE,V1-49152+6144*(k//3-5)+2048*(k%3)+1024*t,"E") for t in range(2)]
        ex=[M(M16,off(GX,4*e_),ftr(rOx[e_],sl+32*t*320,rOx[e_],sl+(32*t+16)*320),b[4+t],"0" if(k==0 and t==0) else None) for t in range(2) for e_ in range(3)]
        return mn,ex
    def flat(me):
        mn,ex=me; o=[m for r in mn for m in r]; n=len(o); st=n//len(ex); res=[]
        for i,m in enumerate(o):
            res.append(m)
            if i%st==st-1 and ex[i//st:i//st+1]: res.append(ex[i//st])
        for x in ex:
            if x not in res: res.append(x)
        return res
    def ilv(a,b):
        o=[]
        for i in range(max(len(a),len(b))): o+=a[i:i+1]+b[i:i+1]
        return o
    PRE={}; HN=[0]; spine=[]; rs=[]; fills=[]; tagf={}; stubs=[]
    def half(ms,waits=(),deps=(),dma=(),lg=False,bar=True,extra=(),dlo=1,dsp=None):
        st=len(spine); extra=list(extra)+ts(f"h{HN[0]}"); HN[0]+=1
        if bar:
            dp=list(deps)
            for t in waits: dp+=tagf.get(t,[])
            pb_,w2=PRE.get(HN[0]-1,([],[])); waits=list(waits)+w2
            for t in w2: dp+=tagf.get(t,[])
            rs.append(([WaitVM(waits)]+pb_+([I("s_waitcnt lgkmcnt(0)")] if lg else [])+[I("s_barrier")]+list(extra),st,dp))
        for m in ms:
            m.i=len(spine); spine.append(m)
            for f in m.fr:
                if not getattr(f,"q",0): f.q=1; rs.append((f,m.i))
        en=len(spine); n=len(dma)
        if n:
            span=max((en-st-dlo-3)*(dsp or OPT['dsp'])//100,1)
            for k,p in enumerate(dma):
                lo=min(st+dlo+k*span//n,en-2); f=Fill(p,lo,min(lo+3,en-1),"dma"); fills.append(f)
                for x in p:
                    if x.tag is not None and x.kind=="vmem": tagf.setdefault(x.tag,[]).append(f)
        return st,en
    def F(txts,lo,hi,ch):
        f=Fill([I(t) if isinstance(t,str) else t for t in (txts if isinstance(txts,list) else [txts])],lo,hi,ch); fills.append(f); return f
    def maxch(S,n,tm):
        o=[f"v_max3_f32 {tm}, {S}, {off(S,1)}, {off(S,2)}"]
        for k in range(3,n-1,2): o.append(f"v_max3_f32 {tm}, {tm}, {off(S,k)}, {off(S,k+1)}")
        o.append(f"v_max_f32 {tm}, {tm}, {off(S,n-1)}"); return o
    def red(x,t,op,n16):
        o=[f"v_mov_b32 {t}, {x}","s_nop 0",f"v_permlane32_swap_b32 {x}, {t}",f"{op} {x}, {x}, {t}"]
        if n16: o+=[f"v_mov_b32 {t}, {x}","s_nop 0",f"v_permlane16_swap_b32 {x}, {t}",f"{op} {x}, {x}, {t}"]
        return o
    def check(S,n,tm,sub,lo,hi,ch):
        for x in maxch(S,n,tm): F(x,lo,hi,ch)
        k=len(stubs); stubs.append((k,sub))
        F([f"v_cmp_lt_f32 vcc, 0x41000000, {tm}",f"s_cbranch_vccnz L_fb{k}",Label(f"L_rt{k}")],lo,hi,ch)
    def init(S,n,tm,t,N,lo,hi,hi2,ch):
        for x in maxch(S,n,tm): F(x,lo,hi,ch)
        F(red(tm,t,"v_max_f32",n==4),lo,hi,ch)
        for k in range(n): F(f"v_sub_f32 {off(N,k)}, 0, {tm}",lo,hi,ch)
        for k in range(n): F(f"v_sub_f32 {off(S,k)}, {off(S,k)}, {tm}",lo,hi2,ch)
    def smx(S,n,lo,his,ch,first,la,lb):
        for k in range(0,n,2):
            hi=his[k//8]; a,b=off(S,k),off(S,k+1)
            F([f"v_exp_f32 {a}, {a}",f"v_exp_f32 {b}, {b}"],lo,hi,ch)
            z=first and k==0
            F([f"v_add_f32 {la}, {'0' if z else la}, {a}",f"v_add_f32 {lb}, {'0' if (z and la!=lb) else lb}, {b}",f"v_cvt_pk_bf16_f32 {off(S,(k//8)*8+(k%8)//2)}, {a}, {b}"],lo,hi,ch)
    tg=[0]
    def cvt8(src,n,mul,dst,lo,hi,ch):
        t=off(SA,8*(tg[0]%4)) if ch!="ep" else [SB,off(SB,8),NM,off(NM,8)][tg[0]%4]; tg[0]+=1
        for k in range(0,n,4): F([f"v_accvgpr_read_b32 {off(t,k+j)}, {off(src,k+j)}" for j in range(4)],lo,hi,ch)
        if mul:
            pm="s[2:3]" if mul==CSC else T(mul,2)
            for k in range(0,n,4): F([f"v_pk_mul_f32 {T(off(t,k+j),2)}, {T(off(t,k+j),2)}, {pm} op_sel_hi:[1,0]" for j in (0,2)] if OPT["pk"] else [f"v_mul_f32 {off(t,k+j)}, {mul}, {off(t,k+j)}" for j in range(4)],lo,hi,ch)
        d=dst or t
        F([f"v_cvt_pk_bf16_f32 {off(d,j)}, {off(t,2*j)}, {off(t,2*j+1)}" for j in range(n//2)],lo,hi,ch)
        return d
    def qlast(rnd,waits,dma,deps=(),sl=(G[1],G[2])):
        (a,ax),(b,bx)=mGQ(18,sl[0]),mGQ(19,sl[1]); ms=ilv(ax,a[0][:3])+ilv(bx,a[0][3:])
        for db in range(6): ms+=[a[1][db],b[0][db],b[1][db]]
        st,en=half(ms,waits,deps,dma)
        lo=bx[2].i+1; ws=[]
        F([f"v_lshrrev_b32 {T4}, 4, {vE}",f"v_and_b32 {T5}, 15, {T4}",f"v_mul_u32_u24 {T5}, 0x190, {T5}",f"v_bfe_u32 {T4}, {T4}, 4, 2"],st,en,"ep")
        F([f"v_lshl_add_u32 {T3}, {T4}, 4, {T5}",f"v_lshl_add_u32 {T4}, {T4}, 3, {T5}","s_mul_i32 s40, s32, 96",f"v_add_u32 {T4}, s40, {T4}",f"v_add_u32 {T3}, {hex(G[0])}, {T3}",f"v_add_u32 {T4}, {hex(G[0])}, {T4}"],st,en,"ep")
        for e_ in range(3):
            d=cvt8(off(GX,4*e_),4,CSC,None,lo,en,"ep"); ws.append(F(f"ds_write_b64 {T4}, {T(d,2)} offset:{32*e_}",lo,en,"ep"))
        for db in range(6):
            for u in range(2): cvt8(off(GA,16*db+8*u),8,CSC,off(Q,8*db+4*u),b[1][db].i+1,en+2*db+u,"ep")
        return ws
    def att(rnd,gl,dm,ws,wt):
        for it in range(8):
            n=2*it; t0=16*rnd+n; g=gl.get(n,[])
            a=mQK(it,0,"0" if it==0 else NM); b=mQK(it,1,NM); x=mQKx(it,"0" if it==0 else NX)
            ms=a+g[:3]+b+ilv(x,g[3:9])+g[9:] if g else a+x+b
            st,en=half(ms,[("T",t0)]+wt.get(n,[]),ws if it==0 else (),dm.get(n,[]),lg=it==0)
            if it==0:
                for t in range(6): F(f"ds_read_b128 {T(off(QX,4*t),4)}, {T3} offset:{64*t}",st,x[0].i-2,"qx")
            pa,pb,px=mPV(it,0),mPV(it,1,it==7),mPVx(it); g=gl.get(n+1,[])
            st2,en2=half(pa+g+pb+px if it<7 else pa+g+px+pb,[("T",t0+1)]+wt.get(n+1,[]),(),dm.get(n+1,[]))
            if it==0:
                init(SA,16,TM,T2,NM,a[-1].i+1,b[0].i,pa[0].i,"sm"); init(SX,4,TMX,T5,NX,x[-1].i+1,px[0].i,px[0].i,"sx")
            else:
                check(SA,16,TM,"L_FA",a[-1].i+1,b[0].i,"sm"); check(SX,4,TMX,"L_FX",x[-1].i+1,px[0].i,"sx")
            smx(SA,16,a[-1].i+1,[pa[0].i,pa[6].i],"sm",it==0,LA_,LB_)
            check(SB,16,TM,"L_FB",b[-1].i+1,pa[0].i,"sm")
            smx(SB,16,b[-1].i+1,[pb[0].i,pb[6 if it<7 else 1].i],"sm",False,LA_,LB_)
            smx(SX,4,x[-1].i+1,[px[0].i],"sx",it==0,LX,LX)
        lo=px[0].i
        F(red(LX,T5,"v_add_f32",True),lo,en2,"sx")
        F([f"v_bfe_u32 {T4}, {vE}, 4, 4",f"v_lshlrev_b32 {T4}, 3, {T4}",f"v_add_u32 {T4}, {hex(SP)}, {T4}","s_lshl_b32 s40, s32, 7",f"v_add_u32 {T5}, s40, {T4}",f"v_mov_b32 {off(NX,1)}, {LX}"],lo,en2,"sx")
        wml=F(f"ds_write_b64 {T5}, {T(NX,2)}",lo,en2,"sx")
        F([f"v_add_f32 {LA_}, {LA_}, {LB_}"]+red(LA_,T2,"v_add_f32",False)+[f"v_rcp_f32 {LA_}, {LA_}"],pb[1].i,en2,"sm")
        return wml,pb
    def epi(rnd,wml,pb,g3,dm3,wt3):
        ob=rnd*16*OITEM; st0,en0=half(g3[0],wt3[0],[wml],dm3[0],lg=True)
        m4=R(QX,8);
        F([f"ds_read_b64 {T(m4[2*k],2)}, {T4} offset:{128*k}" for k in range(4)],st0-1,en0,"ex")
        F([f"v_min3_f32 {T5}, {m4[0]}, {m4[2]}, {m4[4]}",f"v_min_f32 {T5}, {T5}, {m4[6]}"]+[f"v_sub_f32 {m4[2*k]}, {T5}, {m4[2*k]}" for k in range(4)]+[f"v_sub_f32 {T5}, {T5}, {NX}"],st0,en0,"ex")
        F([f"v_exp_f32 {m4[2*k]}, {m4[2*k]}" for k in range(4)]+[f"v_exp_f32 {T5}, {T5}"],st0,en0,"ex")
        F([f"v_mul_f32 {LX}, {m4[0]}, {m4[1]}"]+[f"v_fmac_f32 {LX}, {m4[2*k]}, {m4[2*k+1]}" for k in range(1,4)]+[f"v_rcp_f32 {LX}, {LX}",f"v_lshrrev_b32 {T4}, 1, {vE}",f"v_mul_f32 {LX}, {LX}, {T5}",
           f"v_add_u32 {T4}, {hex(V1-24576)}, {T4}",f"v_add_u32 {T5}, s33, {T4}","s_mul_i32 s40, s32, 1536",f"v_add_u32 {T4}, s40, {T4}"],st0,en0,"ex")
        wr=[]
        for b in range(12):
            d=cvt8(off(OX,4*b),4,LX,None,st0,en0,"ex"); wr.append(F(f"ds_write_b64 {T5}, {T(d,2)} offset:{512*b}",st0,en0,"ex"))
        sts=[]; sf=[]; cv={}
        hold=lambda s: off(Q,4*s) if rnd else off(Q,16+4*s) if s<8 else off(PB,36+4*(s-8))
        def mainc(ss,lo,hi):
            for s in ss:
                cvt8(off(O,8*s),8,LA_,hold(s),lo,hi(s),"ex")
                sts.append((hi(s),[f"s_add_u32 s41, s52, {hex(ob+(s//4)*4096)}",I(f"buffer_store_dwordx4 {T(hold(s),4)}, {vM}, {sWS}, s41 offen offset:{1024*(s%4)}{osc}",("O",rnd))]))
        n1=len(g3[1]); nm0=OPT.get("nm0",2)
        mainc(range(nm0),st0,lambda s:en0+2+2*s)
        st1,en1=half(g3[1],wt3[1],wr,dm3[1],lg=True)
        rds=[]; xw=[]; xs=[]
        if rnd: F([f"v_subrev_u32 {x}, {hex(GB-XB)}, {a}" for a,x in zip(rW[:1]+rWx,rK)]+[f"v_subrev_u32 {T3}, {hex(49152-45056)}, {vE}"],st1,en1-8,"ex")
        for e_ in range(3):
            rds.append(F([f"ds_read_b64 {T(m4[2*k],2)}, {T4} offset:{6144*k+512*e_}" for k in range(4)],st1-1,en1-6,"ex"))
            a=R(off(QX,8),8)
            for k in range(4):
                for j in range(2):
                    x,y=(a[2*j],a[2*j+1]) if k==0 else (a[4],a[5])
                    F([f"v_lshlrev_b32 {x}, 16, {m4[2*k+j]}",f"v_and_b32 {y}, 0xffff0000, {m4[2*k+j]}"]+([f"v_add_f32 {a[2*j]}, {a[2*j]}, {x}",f"v_add_f32 {a[2*j+1]}, {a[2*j+1]}, {y}"] if k else []),st1,en1-4,"ex")
            d=off(QX,16+2*e_)
            F([f"v_cvt_pk_bf16_f32 {d}, {a[0]}, {a[1]}",f"v_cvt_pk_bf16_f32 {off(d,1)}, {a[2]}, {a[3]}"],st1,en1-2,"ex")
            x=[f"s_add_u32 s40, s52, s{60+e_}",f"s_add_u32 s40, s40, {hex(ob)}",I(f"buffer_store_dwordx2 {T(d,2)}, {vE}, {sWS}, s40 offen{osc}",("O",rnd))]
            xs.append((en1-2,x))
            if rnd:
                xw.append(F([f"s_cmp_ge_u32 s{60+e_}, 0x1000","s_cselect_b32 s40, 0x5000, 0",f"s_add_u32 s40, s40, s{60+e_}",f"v_add_u32 {T2}, s40, {T3}",f"ds_write_b64 {T2}, {T(d,2)}"],st1,en1-1,"ex"))
        st2,en2=half(g3[2],wt3[2],rds+xw,dm3[2],lg=bool(rnd),dsp=25)
        if rnd: F([f"ds_read_b128 {T(off(QX,4*t),4)}, {T3} offset:{1024*t+(20480 if t>=4 else 0)}" for t in range(6)],st2,en2-2,"xr")
        mainc(range(nm0,12),st1,lambda s:en1+(en2-en1-2)*(s+1-nm0)//(12-nm0))
        if rnd:
            order=sts[:nm0]+xs+sts[nm0:]; p=st1; qxr=en2-2
            for k,(lo,x) in enumerate(order):
                p=max(p+OPT["ssp"],lo); hi=min(p+3,st2-1) if (lo,x) in xs else p+3
                sf.append(F(x,min(p,hi-1),hi,"st"))
            return sf,st2,en2
        qs=en2; nq=30
        p=st2+6; sp=OPT["ssp1"]
        for k,(lo,x) in enumerate(sts[:4]+xs+sts[4:]):
            s_=k if k<4 else k-3; lim=qs+nq-2 if 4<=k<7 else qs+14+3*(2+s_//2) if s_<8 else qs+nq+62
            p=min(max(p+sp,lo),lim-1); sf.append(F(x,p,min(p+3,lim),"st"))
        return sf,st2,en2
    NEARLY=0
    hs=[G[0],G[1],G[2],K0,K1,V0,V1]; slot={s:hs[s%7] for s in range(17)}; slot.update({17:K1,18:V1,19:G[1]})
    prog=pre0+pre1+pre
    for s in range(7):
        for p in dmaQ(0,s,slot[s]): prog+=p
        tagf[("GQ",0,s)]=[]
        if s==1: prog+=pre2
    prog+=pre3+wo_regs()
    for s in range(18):
        d=dmaQ(0,s+6,slot[s+6]) if 1<=s<=10 else {11:lambda:dmaT(0),12:lambda:dmaQ(0,17,K1),13:lambda:dmaT(1),14:lambda:dmaQ(0,18,V1),16:lambda:dmaQ(0,19,G[1])}.get(s,list)()
        half(flat(mGQ(s,slot[s])),[("GQ",0,s)],(),d)
    ws=qlast(0,[("GQ",0,18),("GQ",0,19)],dmaT(2),sl=(V1,G[1]))
    gl={n:flat(mGQ(n-1,G[n%3])) for n in range(1,16)}
    dm={n:(dmaQ(1,0,G[1]) if n==0 else [])+dmaQ(1,n+1,G[(n+2)%3])+dmaT(n+3) for n in range(16)}
    wml,pb=att(0,gl,dm,ws,{n:[("GQ",1,n-1)] for n in range(1,16)})
    sf,st2,en2=epi(0,wml,pb,[flat(mGQ(15+k,G[(16+k)%3])) for k in range(3)],[dmaQ(1,17,G[0]),dmaQ(1,18,G[1]),dmaQ(1,19,G[2])+dmaT(19)],[[("GQ",1,15+k)] for k in range(3)])
    ws=qlast(1,[("GQ",1,18),("GQ",1,19)],[]); tagf[("O",0)]=sf
    en=len(spine)
    F([f"v_mov_b32 {a}, {b}" for a,b in zip(dO,HO[:5])],en-20,en-2,"dma")
    def pubI(rnd): return [I(f"v_mov_b32 {VP}, {hex(1<<(16*rnd))}"),I("s_mov_b64 exec, s[44:45]"),I(f"buffer_atomic_add {VP}, off, {sDB}, 0 sc1",("A",rnd)),I("s_mov_b64 exec, -1")]
    def polI(rnd): return [I(f"buffer_load_dword {VP}, off, {sDB}, 0 sc1",("P",rnd))]
    def chkI(rnd): return [I(f"v_readfirstlane_b32 s40, {VP}"),I(f"s_bfe_u32 s40, s40, {hex(0x100000|16*rnd)}"),I("s_cmp_lt_u32 s40, s57"),I(f"s_cbranch_scc1 L_sp{rnd}"),Label(f"L_pr{rnd}")]
    pos=USE+[16,17,18]+list(range(19,19+24-KT)); P0=OPT["pubh"]; P2=19+OPT["pub2"]; C2=19+OPT["pol2"]+1
    NH=pos[-1]+1; dB={n:[] for n in range(NH)}; dW_={n:[] for n in range(NH)}; dT={n:(dmaT(16+n+3) if 1<=n<=12 else []) for n in range(NH)}
    L=lambda x:[int(y) for y in str(x).split(".")]
    NB=L(OPT["nb"]); NW=L(OPT["nw"]); NB2=L(OPT["nb2"]); PH=NB[3]; wtx={}
    for k in range(24):
        nw0=[0,0,1][k] if k<3 else pos[k-3]+1 if k<KT else 13+k-KT if k<KT+3 else pos[k-6]+1
        nw=NW[k] if k<len(NW) else nw0
        assert nw0<=nw<pos[k],("W",k,nw0,nw); dW_[nw]+=dmaO(k)
        if 12<=k<15: continue
        nb0=P0+1 if k<3 else pos[k-3]+1 if k<12 else C2
        nb=(NB[k] if k<len(NB) else nb0) if k<12 else C2+NB2[k-15]
        assert nb0<=nb<pos[k] and (k<4 or nb>=PH),("B",k,nb0,nb)
        if k>=15 and k%3==0: dB[nb]+=dmaE(k//3-4); wtx[k]=[("B",100+k//3-4)]
        dB[nb]+=ldB(k)
    H0=HN[0]; PRE[H0+PH]=(chkI(0),[("P",0)]); PRE[H0+C2]=(chkI(1),[("P",1)]); PRE[H0+P0+1]=([],[("O",0)]); PRE[H0+P2+1]=([],[("O",1)])
    dm={n:dB[n]+dW_[n]+dT[n] for n in range(NH)}
    dm[P0+1]=[pubI(0)]+dm[P0+1]; dm[PH-1]=[polI(0)]+dm[PH-1]; dm[P2+1]=[pubI(1)]+dm[P2+1]; dm[C2-1]=[polI(1)]+dm[C2-1] if OPT.get("pfirst",1) else dm[C2-1]+[polI(1)]
    assert P0+1<PH-1 and P2+1<=C2-1
    gl={n:flat(mGO(k)) for k,n in enumerate(USE)}
    i0=len(spine)
    F([f"v_mov_b32 {a}, {b}" for a,b in zip([rO]+rOx,HO[5:])],i0-1,i0+20,"mv")
    wml,pb=att(1,gl,dm,ws,{n:[("GO",k)] for k,n in enumerate(USE)})
    sf,st2,en2=epi(1,wml,pb,[flat(mGO(ND+k)) for k in range(3)],[dm[16+k] for k in range(3)],[[("GO",ND+k)] for k in range(3)])
    tagf[("O",1)]=sf
    for k in range(KT,24):
        mn,ex=mGO(k)
        ms=flat((mn,ex)) if k<23 else ilv(ex,mn[0]+[mn[1][0]])+[mn[2][0],mn[3][0]]+[mn[u][cb] for cb in range(1,5) for u in range(1,4)]
        st,en=half(ms,[("GO",k)]+wtx.get(k,[]),(),dm[pos[k]],dsp=70 if pos[k]==C2-1 else None)
    F(["s_lshl_b32 s40, s32, 11","s_mul_i32 s41, s32, 12288",f"v_subrev_u32 {T4}, s40, {vM}",f"v_subrev_u32 {T5}, s41, {vM}",f"v_lshrrev_b32 {T5}, 1, {T5}","s_lshl_b32 s40, s32, 9","s_add_u32 s60, s58, s40",
       "s_and_b32 s40, s40, 0x200","s_add_u32 s62, s58, s40"],st,en,"fin")
    for e_ in range(3):
        d=cvt8(off(GX,4*e_),4,None,None,ex[-1].i+1,en,"fin")
        F([f"s_add_u32 s40, {'s62' if e_==2 else 's60'}, {hex(40960+2048*e_)}",f"buffer_store_dwordx2 {T(d,2)}, {T5}, {sWS}, s40 offen"],ex[-1].i+1,en,"fin")
    for s in range(10):
        lo=min(mn[3][s//2].i+1,en-1); d=cvt8(off(GA,8*s),8,None,None,lo,en,"fin")
        F([f"s_add_u32 s40, s58, {hex((s//4)*4096)}",f"buffer_store_dwordx4 {T(d,4)}, {T4}, {sWS}, s40 offen offset:{1024*(s%4)}"],lo,en,"fin")
    rs.sort(key=lambda x:x[1])
    pa_=Pool(PA,7)
    if OPT.get("bigp"): pa_.free+=[off(PB,24+4*k) for k in range(6)]
    prog+=schedule(spine,rs,fills,{"A":pa_,"B":Pool(PB,6),"E":Pool(PB,4)},LA=OPT["LA"])
    kl=OPT["kill"]
    if kl:
        km={"T":"T","GQ":"G","GO":"W","B":"B","O":"S","A":"P","P":"P"}
        prog=[x for x in prog if not(x.kind=="vmem" and x.tag and km[x.tag[0]] in kl) and not(x.txt.startswith("s_cbranch_vccnz")) and not("P" in kl and "L_sp" in x.txt)]
        if "C" in kl:
            k0=[i for i,x in enumerate(prog) if x.txt=="s_barrier"][0]
            def cf(x):
                if x.txt.startswith("ds_read_b128") or "tr_b16" in x.txt:
                    p=x.txt.split(); return I(f"{p[0]} {p[1]} {vE if 'b128' in p[0] else VP} offset:{int(p[3][7:])&0x3c00}")
                return x
            prog=prog[:k0]+[I(f"v_lshrrev_b32 {VP}, 1, {vE}")]+[cf(x) for x in prog[k0:]]
        if "Z" in kl: prog=[I("s_mov_b32 s39, 0") if x.txt.startswith("s_mov_b32 s39") else x for x in prog]
        if "Y" in kl: prog=[I(x.txt.replace(" lds","").replace("dwordx4 ","dwordx4 "+T(off(PB,48),4)+", "),None) if (x.kind=="vmem" and x.txt.endswith("lds")) else x for x in prog]
        if "N" in kl: OPT["nolg"]=1
        if "R" in kl: prog=[x for x in prog if x.txt!="s_barrier"]
        if "V" in kl: prog=[x for x in prog if not x.txt.startswith(("v_exp","v_max3","v_add_f32","v_cvt"))]
        if "L" in kl: prog=[x for x in prog if not x.txt.startswith("ds_read")]
    prog+=ts()
    if OPT["ts"]:
        prog+=[I("s_waitcnt lgkmcnt(0)"),I("s_lshl_b32 s40, s63, 8"),I(f"s_add_u32 s40, s40, {hex(64<<20)}"),I("s_lshl_b32 s41, s32, 6"),I("s_add_u32 s40, s40, s41"),I("s_mov_b64 exec, 1")]
        for k in range(TS[0]): prog+=[I(f"v_mov_b32 {T2}, s{64+2*k}"),I(f"buffer_store_dword {T2}, off, {sWS}, s40 offset:{4*k}")]
    prog+=[Label("L_end"),I("s_endpgm")]
    st={}; out=finalize(prog,age=OPT.get("age",96),stats=st); print("k1",st,"mfma",len(spine),"cyc",sum(m.dur for m in spine),file=sys.stderr)
    txt=[x.txt for x in out]
    if OPT.get("nolg"): k0=txt.index("s_barrier"); txt=txt[:k0]+[x for x in txt[k0:-40] if "lgkmcnt" not in x]+txt[-40:]
    for k,sub in stubs: txt+=[f"L_fb{k}:",f"s_call_b64 s[46:47], {sub}",f"s_branch L_rt{k}"]
    for nm,S,N,n,tm,t,acc,na,ls in (("L_FA",SA,NM,16,TM,T2,O,96,[LA_,LB_]),("L_FB",SB,NM,16,TM,T2,O,96,[LA_,LB_]),("L_FX",SX,NX,4,TMX,T5,OX,48,[LX])):
        p=["s_nop 15","s_nop 15"]+red(tm,t,"v_max_f32",n==4)+[f"v_max_f32 {tm}, 0, {tm}"]
        p+=[f"v_sub_f32 {off(S,k)}, {off(S,k)}, {tm}" for k in range(n)]+[f"v_sub_f32 {off(N,k)}, {off(N,k)}, {tm}" for k in range(n)]
        p+=[f"v_exp_f32 {tm}, -{tm}","s_nop 1"]+[f"v_mul_f32 {x}, {x}, {tm}" for x in ls]
        for k in range(na): p+=[f"v_accvgpr_read_b32 {t}, {off(acc,k)}",f"v_mul_f32 {t}, {t}, {tm}",f"v_accvgpr_write_b32 {off(acc,k)}, {t}"]
        if nm=="L_FB":
            for r in R(SA,4)+R(off(SA,8),4):
                p+=[f"v_lshlrev_b32 {t}, 16, {r}",f"v_and_b32 {r}, 0xffff0000, {r}",f"v_mul_f32 {t}, {t}, {tm}",f"v_mul_f32 {r}, {r}, {tm}",f"v_cvt_pk_bf16_f32 {r}, {t}, {r}"]
        txt+=[nm+":"]+[x.txt for x in finalize([I(x) for x in p])]+["s_nop 3","s_setpc_b64 s[46:47]"]
    for r in range(2):
        txt+=[f"L_sp{r}:","s_sleep 4",f"buffer_load_dword {VP}, off, {sDB}, 0 sc1","s_waitcnt vmcnt(0)",f"v_readfirstlane_b32 s40, {VP}","s_nop 0",f"s_bfe_u32 s40, s40, {hex(0x100000|16*r)}","s_cmp_lt_u32 s40, s57",f"s_cbranch_scc1 L_sp{r}",f"s_branch L_pr{r}"]
    return txt+["L_last:"]

def k2():
    p=["s_cmp_ge_u32 s2, 0x100","s_cbranch_scc1 L_end2","s_load_dwordx2 s[4:5], s[0:1], 96","s_load_dwordx2 s[8:9], s[0:1], 80",
       "v_lshrrev_b32 v1, 6, v0","v_and_b32 v0, 63, v0","s_lshr_b32 s13, s2, 2","s_and_b32 s14, s2, 3","v_readfirstlane_b32 s12, v1",
       f"s_mul_i32 s15, s13, {PT}",f"s_add_u32 s15, s15, {hex(PART)}","s_mul_i32 s16, s14, 10240","s_lshl_b32 s17, s12, 11","s_add_u32 s16, s16, s17","s_add_u32 s16, s16, s15",
       "v_lshlrev_b32 v2, 4, v0","s_mov_b32 s6, 0x10000000","s_mov_b32 s7, 0x20000","s_mov_b32 s10, 2949120","s_mov_b32 s11, 0x20000","s_waitcnt lgkmcnt(0)"]
    for ks in range(4):
        p+=[f"buffer_load_dwordx4 v[{8+8*ks}:{11+8*ks}], v2, s[4:7], s16 offen",f"buffer_load_dwordx4 v[{12+8*ks}:{15+8*ks}], v2, s[4:7], s16 offen offset:1024",f"s_add_u32 s16, s16, {64*PT}"]
    p+=["s_and_b32 s18, s14, 1","s_mul_i32 s18, s18, 5","s_add_u32 s18, s18, s12","s_lshl_b32 s19, s18, 9","s_add_u32 s19, s19, s15","s_add_u32 s19, s19, 40960","v_lshlrev_b32 v3, 3, v0"]
    for ks in range(4): p+=[f"buffer_load_dwordx2 v[{40+2*ks}:{41+2*ks}], v3, s[4:7], s19 offen",f"s_add_u32 s19, s19, {64*PT}"]
    p+=["s_bfe_u32 s20, s13, 0x30002","s_mul_i32 s20, s20, 368640","s_lshr_b32 s21, s13, 5","s_mul_i32 s21, s21, 1280","s_add_u32 s20, s20, s21","s_and_b32 s21, s13, 3","s_mul_i32 s21, s21, 320","s_add_u32 s20, s20, s21",
        "s_mul_i32 s21, s14, 81920","s_add_u32 s21, s21, s20","s_lshl_b32 s22, s12, 6","s_add_u32 s21, s21, s22",
        "v_and_b32 v4, 31, v0","v_mul_u32_u24 v4, 0xa00, v4","v_lshrrev_b32 v5, 5, v0","v_lshl_add_u32 v4, v5, 4, v4",
        "s_lshl_b32 s22, s18, 5","s_add_u32 s22, s22, s20","s_add_u32 s22, s22, 327680",
        "v_and_b32 v5, 15, v0","v_mul_u32_u24 v5, 0xa00, v5","v_lshrrev_b32 v6, 4, v0","v_lshl_add_u32 v5, v6, 3, v5"]
    def summ(b,st,j):
        o=[f"v_lshlrev_b32 v6, 16, v{b+j}",f"v_and_b32 v7, 0xffff0000, v{b+j}"]
        for ks in range(1,4): r=b+st*ks+j; o+=[f"v_lshlrev_b32 v1, 16, v{r}",f"v_and_b32 v{r}, 0xffff0000, v{r}","v_add_f32 v6, v6, v1",f"v_add_f32 v7, v7, v{r}"]
        return o+[f"v_cvt_pk_bf16_f32 v{b+j}, v6, v7"]
    for u in range(2):
        for j in range(4): p+=summ(8+4*u,8,j)
        p.append(f"buffer_store_dwordx4 v[{8+4*u}:{11+4*u}], v4, s[8:11], s21 offen offset:{32*u}")
    p+=["s_cmp_ge_u32 s14, 2","s_cbranch_scc1 L_end2"]+summ(40,2,0)+summ(40,2,1)+["buffer_store_dwordx2 v[40:41], v5, s[8:11], s22 offen"]
    return [x.txt for x in finalize([I(x) for x in p])]+["L_end2:","s_endpgm"]

ref=open(f"cdna_kernels/{NAME}.s.ref").read().split("\n")
hdr=[x for x in ref if x.startswith(";") and "@launch" not in x and "Override" not in x and "grid=ceil" not in x]
o=hdr+[f"; @launch kernel={NAME}_kernel grid=(256,1,1) block=(256,1,1) lds=163840","; @launch kernel=reduce_kernel grid=(256,1,1) block=(320,1,1) lds=0",'.amdgcn_target "amdgcn-amd-amdhsa--gfx950"',".text"]
for nm,body in ((NAME+"_kernel",k1()),("reduce_kernel",k2())):
    o+=[f".globl {nm}",".p2align 8",f".type {nm},@function",nm+":"]+body
o.append('.section .rodata,"a"')
for nm,nv,ao in ((NAME+"_kernel",512,256),("reduce_kernel",48,48)):
    o+=[".p2align 6",f".amdhsa_kernel {nm}",f"  .amdhsa_next_free_vgpr {nv}","  .amdhsa_next_free_sgpr 102",f"  .amdhsa_accum_offset {ao}","  .amdhsa_group_segment_fixed_size 0",
        "  .amdhsa_kernarg_size 104","  .amdhsa_user_sgpr_count 2","  .amdhsa_user_sgpr_kernarg_segment_ptr 1","  .amdhsa_system_sgpr_workgroup_id_x 1",".end_amdhsa_kernel"]
open(sys.argv[1],"w").write("\n".join(o)+"\n")
```

```python
import sys, numpy as np
from asmlib import *
from vexpr import Ctx, E, SV
NAME="concat_heads__gqa_block_cached__gqa_block_cached__near_ridge"
OPT=dict(ts=0, LA=200, ntw=0, ntx=0, kill="", dcost=8, pf=1, bsc=1, dsp=50, pubh=2, use="5.6.8.10.12.14", nb="3.4.6.8.10.12.13.14.15", nw="0.2.5.7.9.11.13.14.15", nb2="0.0.0.1.1.2.2.3.3", pub2=1, pol2=4, pk=1, ssp=4, own1=1, wr=2, psc=1, mrg=3, k2s=0, k2l=0, pe0=260, ssp1=6, krot=0, osc=1, pfk=0, pf0=60, pfd=27, pfn=0, tnt=1, h0t=100, npre=3, nper=2)
for a in sys.argv[2:]:
    k,v=a.split("="); OPT[k]=int(v) if v.lstrip("-").isdigit() else v
M32="v_mfma_f32_32x32x16_bf16"; M16="v_mfma_f32_16x16x32_bf16"; M16S="v_mfma_f32_16x16x16_bf16"
K0,K1,V0,V1=0,24576,49152,73728; GB=98304; G=[GB,GB+21504,GB+43008]; SP=162816
OITEM=55296; PART=32<<20; PT=46080
_v=[0]
def va(n,al=1):
    _v[0]=(_v[0]+al-1)//al*al; r=f"v{_v[0]}"; _v[0]+=n; return r
Q=va(48,4); QX=va(24,4); SA=va(16,4); SB=va(16,4); SX=va(4,4); NM=va(16,4); NX=va(4,4)
PA=va(28,4); PB=va(52,4)
dK=[va(1) for _ in range(6)]; dV=[va(1) for _ in range(3)]
rK=[va(1) for _ in range(4)]; rKx=[va(1) for _ in range(2)]; rV=[va(1) for _ in range(2)]; rVx=[va(1) for _ in range(4)]
dW=[va(1) for _ in range(3)]; dX=[va(1) for _ in range(3)]
rW=[va(1) for _ in range(2)]; rWx=[va(1) for _ in range(3)]; rX=[va(1) for _ in range(2)]; rXx=va(1)
dO=dW+dX[:2]; rO=rW[0]; rOx=rWx
vM=va(1); vE=va(1); LA_=va(1,2); LB_=va(1); LX=va(1,2); TM=va(1); T2=va(1); T3=va(1); TMX=va(1); VP=va(1); T4=va(1); T5=va(1)
assert _v[0]<=256,_v
O="a0"; OX="a96"; GA="a144"; GX="a240"
BSET=[[off(PB,4*k) for k in range(6)],[off(PB,24+4*k) for k in range(6)],[off(PB,48)]+["a224","a228","a232","a236","a252"]]
sK,sV,sWq,sX,sWo,sWS,sDB="s[4:7]","s[8:11]","s[12:15]","s[16:19]","s[20:23]","s[24:27]","s[28:31]"
CSC=hex(int(np.float32(192**-0.5*np.log2(np.e)).view(np.uint32)))
def srd(pre,r,base,adds,size):
    if adds: pre+= [I(f"s_add_u32 s{r}, s{base}, {adds}"),I(f"s_addc_u32 s{r+1}, s{base+1}, 0"),I(f"s_sub_u32 s{r+2}, {hex(size)}, {adds}")]
    else: pre+=[I(f"s_mov_b32 s{r}, s{base}"),I(f"s_mov_b32 s{r+1}, s{base+1}"),I(f"s_mov_b32 s{r+2}, {hex(size)}")]
    pre.append(I(f"s_mov_b32 s{r+3}, 0x20000"))
TS=[0]
def ts(nm=None):
    if not OPT["ts"] or (nm and nm not in str(OPT.get("tsl","h0.h10.h19.h27.h35.h39.h47.h55.h58")).split(".")): return []
    k=TS[0]; TS[0]+=1; assert k<(5 if OPT['wr'] else 16)
    return [I(f"s_memtime s[{64+2*k}:{65+2*k}]")]

SCM=['',' sc1',' nt',' sc0 sc1',' sc1 nt']
def k1():
    pre=[I("s_cmp_ge_u32 s2, 0x100"),I("s_cbranch_scc1 L_end")]+ts()
    if OPT["pf"]:
        pre+=[I("s_getpc_b64 s[4:5]"),Label("L_pc"),I("s_lshr_b32 s3, s2, 3"),I("s_lshl_b32 s3, s3, 12"),I(f"v_lshl_add_u32 {SX}, v0, 4, s3"),I(f"v_min_u32 {SX}, L_last-L_pc-16, {SX}"),
              I(f"global_load_dwordx4 {T(SX,4)}, {SX}, s[4:5]")]
    if OPT.get("rot"): pre+=[I("s_lshl_b32 s3, s2, 5"),I("s_lshr_b32 s2, s2, 3"),I("s_or_b32 s2, s2, s3"),I("s_and_b32 s2, s2, 255")]
    pre+=[I("s_load_dwordx8 s[40:47], s[0:1], 0"),I("s_load_dwordx2 s[48:49], s[0:1], 32"),
          I("s_load_dwordx2 s[50:51], s[0:1], 40"),I("s_load_dwordx4 s[52:55], s[0:1], 48"),I("s_load_dwordx4 s[56:59], s[0:1], 64"),
          I("s_load_dwordx2 s[60:61], s[0:1], 88"),I("s_load_dwordx2 s[62:63], s[0:1], 96")]
    pre+=[I(x) for x in ["v_lshrrev_b32 v1, 6, v0","s_and_b32 s97, s2, 3","s_bfe_u32 s96, s2, 0x10002","s_bfe_u32 s98, s2, 0x30003","s_lshr_b32 s99, s2, 6",
          "v_readfirstlane_b32 s32, v1","s_lshl_b32 s100, s97, 2","s_add_u32 s100, s100, s99",
          *[["s_mov_b32 s37, 0"],["s_mul_i32 s37, s98, 5","s_lshr_b32 s37, s37, 1","s_mul_i32 s101, s99, 5","s_add_u32 s37, s37, s101"],["s_and_b32 s37, s98, 1","s_mul_i32 s37, s37, 10"],["s_and_b32 s37, s98, 3","s_mul_i32 s37, s37, 5"],["s_and_b32 s37, s98, 1","s_mul_i32 s37, s37, 2"],["s_add_u32 s37, s98, s99","s_and_b32 s37, s37, 3","s_lshl_b32 s37, s37, 1"]][OPT.get("rotm",1)],
          "s_cmp_ge_u32 s37, 20","s_cselect_b32 s101, 20, 0","s_sub_u32 s37, s37, s101","s_lshl_b32 s37, s37, 6",
          "s_mul_i32 s33, s32, 6144","s_mul_i32 s34, s32, 3072","s_lshl_b32 s35, s32, 11","s_mul_i32 s36, s32, 5120",
          ]]; pre0=pre; pre=[I(x) for x in ["s_waitcnt lgkmcnt(0)","s_cmp_eq_u32 s96, 0","s_cselect_b64 s[40:41], s[40:41], s[50:51]","s_cselect_b64 s[42:43], s[42:43], s[52:53]",
          "s_cselect_b64 s[44:45], s[44:45], s[54:55]","s_cselect_b64 s[46:47], s[46:47], s[56:57]","s_cselect_b64 s[48:49], s[48:49], s[58:59]",
          "s_mul_i32 s101, s100, 384"]]
    srd(pre,12,46,"s101",7864320)
    pre.append(I("s_mul_i32 s101, s98, 184320")); srd(pre,16,40,"s101",1474560)
    pre+=[I("s_lshl_b32 s101, s98, 5"),I("s_add_u32 s101, s101, s100"),I("s_mul_i32 s101, s101, 196608")]
    srd(pre,4,42,"s101",50331648); srd(pre,8,44,"s101",50331648)
    pre.append(I("s_mul_i32 s101, s99, 320")); srd(pre,20,48,"s101",7864320)
    srd(pre,24,62,None,268435456); srd(pre,28,60,None,256); pre.append(I("s_mov_b32 s63, s2"))
    pre+=[I(x) for x in ["s_lshl_b32 s101, s32, 4","s_mov_b64 s[42:43], 0xffff","s_lshl_b64 s[42:43], s[42:43], s101"]]
    tid=np.arange(256); w_=tid>>6; l_=tid&63
    SV.update(s32=w_,s33=w_*6144,s35=w_*2048)
    c=Ctx(R(Q,40)); chk=[]
    l=(E(c,"v0",tid,False)&63).keep(); w=E(c,"v1",w_,False)
    wv=(w+0|0).keep()
    c.free=[r for r in c.free if r not in("v0","v1")]
    def div(q,n): return (q*(2731 if n==24 else 3277))>>16
    for j in range(3):
        q=(l+64*j|0).keep(); r=div(q,24).keep(); pc=(q-r*24); sw=((r&2)<<1)|((wv&1)<<1)
        e=(((wv<<3)+r)*12288+((pc^sw)<<4)-1024*j).to(dW[j]); q.drop(); r.drop()
        qq=64*j+l_; rr_=8*w_+qq//24; chk.append((e,rr_*12288+((qq%24)^((((rr_>>1)&1)<<2)|(((rr_>>3)&1)<<1)))*16-1024*j))
    xc=(((l&3)^((l>>4)&3))<<4).keep()
    e=(((wv<<5)+(l>>2))*1280+xc).to(dX[0]); chk.append((e,(32*w_+(l_>>2))*1280+((l_&3)^((l_>>4)&3))*16))
    (e+(16*1280-1024)).to(dX[1]); ((l>>2)*1280+xc+128*1280).to(dX[2]); xc.drop()
    pre1=c.out; c.out=[]
    rr=((l>>2)&3).keep(); cc=(l&3).keep(); h=(l>>5).keep(); g=(l>>4).keep(); Gg=(g&1).keep(); q16=(l&15).keep(); r32=(l&31).keep()
    rr_,cc_,h_,g_,G_=(l_>>2)&3,l_&3,l_>>5,l_>>4,(l_>>4)&1
    for d in range(2):
        e=(((h<<3)+rr)*384+(((((Gg<<1)+(cc&1))+4*d)^(((rr&2)<<1)|(h<<1)))<<4)+((cc>>1)<<3)+GB).to(rW[d])
        chk.append((e,GB+(8*h_+rr_)*384+((4*d+2*G_+(cc_&1))^(4*(rr_>>1)|2*h_))*16+8*(cc_>>1)))
    for e_ in range(3):
        e=(((g<<3)+rr)*384+(((((wv*3+e_)<<1)+(cc>>1))^(((rr&2)<<1)|(Gg<<1)))<<4)+((cc&1)<<3)+GB).to(rWx[e_])
        chk.append((e,GB+(8*g_+rr_)*384+((2*(3*w_+e_)+(cc_>>1))^(4*(rr_>>1)|2*G_))*16+8*(cc_&1)))
    for u in range(2):
        e=((r32<<6)+(((h+2*u|0)^((r32>>2)&3))<<4)+"s35"+(GB+12288)).to(rX[u])
        chk.append((e,GB+12288+2048*w_+(l_&31)*64+((2*u+h_)^(((l_&31)>>2)&3))*16))
    e=((q16<<6)+((g^(q16>>2))<<4)+(GB+20480)).to(rXx); chk.append((e,GB+20480+(l_&15)*64+(g_^((l_&15)>>2))*16))
    gs=rW+rWx+rX+[rXx]; alt={GB:gs,0:R(SA,8),V0:R(off(PB,36),8)}
    for b in (0,V0):
        for a,x in zip(gs,alt[b]): c.out.append(I(f"v_subrev_u32 {x}, {hex(GB-b)}, {a}"))
    pre2=c.out; c.out=[]
    for j in range(6):
        r=div(l+64*j|0,24); e=(((l^((r>>1)&7))<<4)+"s33"+(4096 if j>=4 else 0)).to(dK[j])
        chk.append((e,16*(l_^((((64*j+l_)//24)>>1)&7))+6144*w_+(4096 if j>=4 else 0)))
    for j in range(3):
        r=div(l+64*j|0,24).keep(); e=(((l^(((r&2)<<1)|((r&4)>>1)))<<4)+"s33").to(dV[j]); r.drop()
        r_=(64*j+l_)//24; chk.append((e,16*(l_^((((r_>>1)&1)<<2)|(((r_>>2)&1)<<1)))+6144*w_))
    for m in range(4):
        e=(r32*384+(((h+2*m|0)^((r32>>1)&7))<<4)).to(rK[m]); chk.append((e,(l_&31)*384+((2*m+h_)^(((l_&31)>>1)&7))*16))
    for t in range(2):
        e=(q16*384+(((g+4*t|0)^(q16>>1))<<4)+"s33").to(rKx[t]); chk.append((e,(16*w_+(l_&15))*384+((4*t+g_)^((l_&15)>>1))*16))
    for d in range(2):
        e=(((h<<2)+rr)*384+(((((Gg<<1)+(cc>>1))+4*d)^(((rr&2)<<1)|(h<<1)))<<4)+((cc&1)<<3)+V0).to(rV[d])
        chk.append((e,V0+(4*h_+rr_)*384+((4*d+2*G_+(cc_>>1))^(4*(rr_>>1)|2*h_))*16+8*(cc_&1)))
    for k in range(4):
        e=(((g<<2)+rr)*384+((((cc>>1)+2*k)^(((rr&2)<<1)|(Gg<<1)))<<4)+((cc&1)<<3)+"s33"+V0).to(rVx[k])
        chk.append((e,V0+(16*w_+4*g_+rr_)*384+((2*k+(cc_>>1))^(4*(rr_>>1)|2*G_))*16+8*(cc_&1)))
    (wv*12288+(l<<4)).to(vM); ((l<<4)+49152).to(vE)
    pre3v=c.out; pre3=[]
    for e,ref in chk: assert (e.val==(ref&0xffffffff)).all(), e.reg
    pre3+=[I(x) for x in [["s_mov_b32 s56, 0","s_add_u32 s56, s98, s99","s_add_u32 s56, s63, s98","s_mov_b32 s56, s63"][OPT["krot"]],f"s_mov_b32 s2, {CSC}","s_mov_b64 s[44:45], 1","s_lshl_b32 s101, s96, 3","s_add_u32 s101, s101, s98","s_lshl_b32 s57, s101, 2","s_add_u32 s57, s57, s97","s_lshl_b32 s57, s57, 2","s_add_u32 s28, s28, s57","s_addc_u32 s29, s29, 0","s_cmp_eq_u32 s32, 0","s_cselect_b32 s30, 4, 0","s_mov_b32 s57, s30",
        "s_nop 0","s_lshl_b32 s58, s97, 4","s_add_u32 s58, s58, s101","s_lshl_b32 s58, s58, 2","s_add_u32 s58, s58, s99",f"s_mul_i32 s58, s58, {PT}",f"s_add_u32 s58, s58, {hex(PART)}",
        "s_lshl_b32 s101, s101, 5"]]
    for i in range(4):
        pre3+=[I(x) for x in ["s_nop 0",f"s_add_u32 s40, s99, {i}","s_and_b32 s40, s40, 3","s_lshl_b32 s41, s97, 2","s_add_u32 s40, s40, s41",f"s_mul_i32 s{48+i}, s40, {192*1280}",
               "s_add_u32 s40, s40, s101",f"s_mul_i32 s{52+i}, s40, {OITEM}"]]
    if OPT["wr"]:
        for j in range(9):
            pre3+=[I(x) for x in ["s_nop 0",f"s_add_u32 s40, s98, {j}","s_cmp_ge_u32 s40, 9","s_cselect_b32 s41, 9, 0","s_sub_u32 s40, s40, s41","s_mul_i32 s41, s40, 43","s_lshr_b32 s41, s41, 7","s_mul_i32 s74, s41, 3","s_sub_u32 s40, s40, s74",
                "s_nop 0","s_add_u32 s41, s41, s99","s_add_u32 s41, s41, 1","s_and_b32 s41, s41, 3","s_lshl2_add_u32 s41, s97, s41",f"s_mul_i32 s{78+j}, s41, 245760","s_mul_i32 s74, s40, 81920",f"s_add_u32 s{78+j}, s{78+j}, s74",
                "s_nop 0","s_add_u32 s41, s41, s101",f"s_mul_i32 s{87+j}, s41, {OITEM}","s_lshl_b32 s74, s40, 12",f"s_add_u32 s{87+j}, s{87+j}, s74"]+([f"s_lshl_b32 s{75+j}, s40, 11"] if j<3 else [])]
    for e_ in range(3):
        pre3+=[I(x) for x in ["s_nop 0","s_mul_i32 s40, s32, 3",f"s_add_u32 s40, s40, {e_}","s_and_b32 s41, s40, 1","s_lshr_b32 s40, s40, 1","s_lshl_b32 s40, s40, 10","s_lshl_b32 s41, s41, 3",f"s_add_u32 s{60+e_}, s40, s41"]]
    HO=R(off(PB,24),9)
    def wo_regs():
        c=Ctx(R(QX,24)); ck=[]; dO=HO[:5]; rO=HO[5]; rOx=HO[6:9]
        l=((E(c,vE,16*l_+49152,False)>>4)&63).keep(); wv=((l&0)+"s32").keep()
        for j in range(5):
            q=(l+64*j|0).keep(); r=div(q,20).keep(); pc=q-r*20
            e=(((wv<<4)+r)*1280+((pc^((r&4)>>1))<<4)-1024*(j%4)).to(dO[j]); q.drop(); r.drop()
            qq=64*j+l_; r_=qq//20; ck.append((e,(16*w_+r_)*1280+((qq%20)^(((r_>>2)&1)<<1))*16-1024*(j%4)))
        rr=((l>>2)&3).keep(); h=(l>>5).keep(); g=(l>>4).keep(); Gg=(g&1).keep()
        e=(((h<<2)+rr)*320+((((Gg<<1)+(l&1))^(h<<1))<<4)+((l&2)<<2)+GB).to(rO); ck.append((e,GB+(4*h_+rr_)*320+((2*G_+(cc_&1))^(2*h_))*16+8*(cc_>>1)))
        base=(((g<<2)+rr)*320+((l&1)<<3)+GB).keep(); lo=((l>>1)&1).keep()
        for e_ in range(3):
            blk=wv+4*e_ if e_<2 else (wv&1)+8
            e=(base+((((blk<<1)+lo)^(Gg<<1))<<4)).to(rOx[e_]); b_=w_+4*e_ if e_<2 else (w_&1)+8
            ck.append((e,GB+(4*g_+rr_)*320+((2*b_+(cc_>>1))^(2*G_))*16+8*(cc_&1)))
        for e,ref in ck: assert (e.val==(ref&0xffffffff)).all(), e.reg
        return c.out
    def D(txt,tag): i=I(txt,tag); i.cost=OPT["dcost"]; return i
    def m0(s,c_): return I(f"s_add_u32 m0, {s}, {hex(c_)}")
    ntw=" nt" if OPT["ntw"] else ""; ntx=" nt" if OPT["ntx"] else ""
    bsc=["",' sc1',' nt',' sc0'][OPT["bsc"]]
    def sof(t,c_):
        if not OPT["krot"]: return [I(f"s_mov_b32 s39, {hex((t//16)*3145728+((t%16)//2)*24576+c_)}")]
        return [I(f"s_add_u32 s39, s56, {(t%16)//2}"),I("s_and_b32 s39, s39, 7"),I("s_mul_i32 s39, s39, 24576")]+([I("s_add_u32 s39, s39, 3145728")] if t>=16 else [])
    psc=SCM[OPT["psc"]]
    osc=["",' sc1',' sc1 nt',' nt',' sc0 sc1'][OPT["osc"]]
    tnt=" nt" if OPT["tnt"] else ""
    def pfU(u):
        so=(u//12)*3145728+((u%12)//2)*32768
        return [I(f"v_lshl_add_u32 {VP}, {vE}, 3, s3"),I(f"s_mov_b32 m0, {hex(SP+512)}"),I(f"s_mov_b32 s39, {hex(so)}"),D(f"buffer_load_dword {VP}, {[sK,sV][u%2]}, s39 offen{' nt' if OPT['pfn'] else ''} lds",("F",u))]
    PFH={}
    if OPT["pfk"]:
        TM_=lambda h: OPT["h0t"]+6.5*h if h<=18 else OPT["h0t"]+125+16*(h-19) if h<35 else OPT["h0t"]+381+14*(h-35) if h<39 else OPT["h0t"]+437+17*(h-39)
        TH=lambda t: 11 if t==0 else 13 if t==1 else 18 if t==2 else 16+t if t<=18 else 37 if t==19 else 20+t
        for u in range(24):
            tau=OPT["pf0"]+OPT["pfd"]*u; h=-1 if tau<OPT["h0t"] else min(x for x in range(60) if TM_(x+1)>tau)
            if h in (39+OPT["pubh"]+1,39+int(str(OPT["nb"]).split(".")[3])-1): h+=1
            i=-(-((u%12)//2)*4//3) if 0 else (((u%12)//2)*4)//3; t=16*(u//12)+2*i+u%2
            tl=16*(u//12)+2*min(7,(((u%12)//2+1)*4-1)//3)+u%2
            if h<TH(tl)-OPT.get("pfm",1): PFH.setdefault(h,[]).append(pfU(u))
        print({h:len(v) for h,v in PFH.items()},file=sys.stderr)
    for r_,k_ in ((0,"wp1"),(1,"wp2")):
        if OPT.get(k_) is not None:
            PFH.setdefault(OPT[k_],[]).append([I(f"v_lshl_add_u32 {VP}, {vE}, 3, s3"),I(f"s_mov_b32 m0, {hex(SP+512)}"),I("s_lshr_b32 s39, s63, 3"),I("s_lshl_b32 s40, s97, 5"),I("s_add_u32 s39, s39, s40"),I("s_mul_i32 s39, s39, 30720")]
                +([I(f"s_add_u32 s39, s39, {16*192*1280}"),I(f"s_min_u32 s39, s39, {7864320-32768-960}")] if r_ else [])+[D(f"buffer_load_dword {VP}, {sWo}, s39 offen lds",("F",50+r_))])
    def dmaT(t):
        so=(t//16)*3145728+((t%16)//2)*24576; slot=[K0,V0,K1,V1][t%4]; tg=("T",t); o=[]
        for j in range(6):
            p=[]
            if t%2==0:
                if j in(0,4): p.append(m0("s33",slot+(4096 if j else 0)))
                if j==0: p+=sof(t,0)
                p.append(D(f"buffer_load_dwordx4 {dK[j]}, {sK}, s39 offen offset:{1024*(j%4)}{tnt} lds",tg))
            else:
                if j in(0,3): p+=[m0("s33",slot+1024*j)]+(sof(t,0) if j==0 else [I("s_add_u32 s39, s39, 0xc00")])
                p.append(D(f"buffer_load_dwordx4 {dV[j%3]}, {sV}, s39 offen offset:{1024*(j%3)}{tnt} lds",tg))
            o.append(p)
        return o
    def dmaQ(rnd,s,slot):
        tg=("GQ",rnd,s); o=[]
        p=[m0("s34",slot)]
        if not(rnd==0 and s==0): p+=[I("s_add_u32 s37, s37, 64"),I("s_cmp_eq_u32 s37, 0x500"),I("s_cselect_b32 s37, 0, s37")]
        p+=[I("s_mul_i32 s38, s37, 6144")]+([I("s_add_u32 s38, s38, 6144")] if rnd else [])
        for j in range(3):
            o.append(p+[D(f"buffer_load_dwordx4 {dW[j]}, {sWq}, s38 offen offset:{1024*j}{ntw} lds",tg)]); p=[]
        o.append([m0("s35",slot+12288),D(f"buffer_load_dwordx4 {dX[0]}, {sX}, s37 offen{ntx} lds",tg)])
        o.append([D(f"buffer_load_dwordx4 {dX[1]}, {sX}, s37 offen offset:1024{ntx} lds",tg)])
        o.append([I(f"s_mov_b32 m0, {hex(slot+20480)}"),I("s_mov_b64 exec, s[42:43]"),D(f"buffer_load_dwordx4 {dX[2]}, {sX}, s37 offen{ntx} lds",tg),I("s_mov_b64 exec, -1")])
        return o
    USE=[int(x) for x in str(OPT["use"]).split(".")]; ND=len(USE); KT=ND+3; XB=4096
    o1=KT+OPT["own1"]-1 if OPT["own1"] else 12
    SEQ=list(range(o1))+[12,13,14]+list(range(o1,12))+list(range(15,24)); IX={k:j for j,k in enumerate(SEQ)}
    def osl(j): return G[(j+1)%3] if j<KT else [XB,V0,K1][j-KT] if j<KT+3 else osl(j-6)
    def oslot(k): return osl(IX[k])
    def bset(k): return BSET[k%3] if k<12 else [off(Q,16*(k-12)+4*u) for u in range(4)]+[off(QX,8*(k-12)+4*t) for t in range(2)] if k<15 else [f"a{16*(k-15)+4*u}" for u in range(4)]
    def dmaO(k):
        slot=oslot(k); tg=("GO",k); o=[]; i=(k%12)//3
        for j in range(5):
            p=[]
            if j in(0,4): p.append(m0("s36",slot+(4096 if j else 0)))
            if j==0: p.append(I(f"s_add_u32 s38, s{75+k%12}, {hex((k//12)*16*192*1280)}" if OPT["wr"] and i and (k>=15 or OPT["wr"]==1) else f"s_add_u32 s38, s{48+i}, {hex((k//12)*16*192*1280+(k%3)*64*1280)}"))
            o.append(p+[D(f"buffer_load_dwordx4 {dO[j]}, {sWo}, s38 offen offset:{1024*(j%4)}{ntw} lds",tg)])
        return o
    def ldB(k):
        i=(k%12)//3; b=bset(k); base=(k//12)*16*OITEM; o=[]
        for u in range(6 if k<15 else 4):
            p=[]
            if u==0: p.append(I(f"s_add_u32 s59, s{84+k%12}, {hex(base)}" if OPT["wr"] and i and (k>=15 or OPT["wr"]==1) else f"s_add_u32 s59, s{52+i}, {hex(base+(k%3)*4096)}"))
            if u==4: p.append(I(f"s_sub_u32 s59, s59, s{75+k%3}" if OPT["wr"] and i and (k>=15 or OPT["wr"]==1) else f"s_add_u32 s59, s{52+i}, {hex(base+(k%3)*2048)}"))
            o.append(p+[D(f"buffer_load_dwordx4 {T(b[u],4)}, {vM if u<4 else vE}, {sWS}, s59 offen offset:{1024*(u%4)}{bsc}",("B",k))])
        return o
    def dmaE(i):
        o=[]
        for j in range(2):
            p=[I("s_lshl_b32 s40, s32, 10")]+([I("s_and_b32 s40, s40, 0x400"),I("s_add_u32 s40, s40, 0x1000")] if j else [])
            p+=[m0("s40",V1+6144*(i-1)),I(f"s_add_u32 s40, s40, s{52+i}"),I(f"s_add_u32 s40, s40, {hex(16*OITEM)}"),D(f"buffer_load_dwordx4 {vE}, {sWS}, s40 offen{bsc} lds",("B",100+i))]
            o.append(p)
        return o
    def dmaE1(k):
        return [[I("s_lshl_b32 s40, s32, 10"),I("s_and_b32 s40, s40, 0x400"),m0("s40",V1+2048*(k-15)),I(f"s_add_u32 s40, s40, s{84+k%12}"),I(f"s_sub_u32 s40, s40, s{75+k%3}"),I(f"s_add_u32 s40, s40, {hex(16*OITEM)}"),D(f"buffer_load_dwordx4 {vE}, {sWS}, s40 offen{bsc} lds",("B",100+k))]]
    def f128(a,imm,pool="A"): return Frag(4,lambda r:[I(f"ds_read_b128 {T(r,4)}, {a} offset:{imm}")],pool)
    def ftr(a0,i0,a1,i1): return Frag(4,lambda r:[I(f"ds_read_b64_tr_b16 {T(r,2)}, {a0} offset:{i0}"),I(f"ds_read_b64_tr_b16 {T(off(r,2),2)}, {a1} offset:{i1}")])
    def mQK(it,t,c0):
        sl=24576*(it%2); S=[SA,SB][t]
        return [M(M32,S,f128(rK[ks%4],sl+t*12288+(ks>>2)*128),off(Q,4*ks),c0 if ks==0 else None) for ks in range(12)]
    def mQKx(it,c0): return [M(M16,SX,f128(rKx[t&1],24576*(it%2)+(t>>1)*128),off(QX,4*t),c0 if t==0 else None) for t in range(6)]
    def mPV(it,t,dbm=False):
        sl=24576*(it%2); S=[SA,SB][t]; o=[]
        for u,db in (sorted([(u,db) for u in range(2) for db in range(6)],key=lambda x:(x[1],x[0])) if dbm else [(u,db) for u in range(2) for db in range(6)]):
            im=sl+(db>>1)*128+(32*t+16*u)*384
            o.append(M(M32,off(O,16*db),ftr(rV[db&1],im,rV[db&1],im+8*384),off(S,8*u),"0" if(it==0 and t==0 and u==0) else None))
        return o
    def mPVx(it):
        o=[]
        for b2 in range(6):
            b=2*b2; im=24576*(it%2)+(b>>2)*128; f=ftr(rVx[b&3],im,rVx[(b+1)&3],im)
            for e_ in range(2): o.append(M(M16S,off(OX,4*(b+e_)),(f,2*e_),SX,"0" if it==0 else None,na=2))
        return o
    def mGQ(s,slot):
        b=GB if slot>=GB else V0 if slot>=V0 else 0; a=alt[b]; sl=slot-b
        xf=[f128(a[5+u],sl,"B") for u in range(2)]; xe=f128(a[7],sl,"B")
        mn=[[M(M32,off(GA,16*db),ftr(a[db&1],sl+(db>>1)*128+16*u*384,a[db&1],sl+(db>>1)*128+(16*u+4)*384),xf[u],"0" if(s==0 and u==0) else None) for db in range(6)] for u in range(2)]
        ex=[M(M16,off(GX,4*e_),ftr(a[2+e_],sl,a[2+e_],sl+4*384),xe,"0" if s==0 else None) for e_ in range(3)]
        return mn,ex
    def mGO(k):
        sl=oslot(k); b=bset(k); rO,*rOx=(rW[:1]+rWx) if sl>=GB else rK; sl-=GB if sl>=GB else XB
        mn=[[M(M32,off(GA,16*cb),ftr(rO,sl+64*cb+16*u*320,rO,sl+64*cb+(16*u+8)*320),b[u],"0" if(k==0 and u==0) else None) for cb in range(5)] for u in range(4)]
        if k>=15: b=b[:4]+[f128(vE,V1-49152+6144*(k//3-5)+2048*(k%3)+1024*t,"E") for t in range(2)]
        ex=[M(M16,off(GX,4*e_),ftr(rOx[e_],sl+32*t*320,rOx[e_],sl+(32*t+16)*320),b[4+t],"0" if(k==0 and t==0) else None) for t in range(2) for e_ in range(3)]
        return mn,ex
    def flat(me):
        mn,ex=me; o=[m for r in mn for m in r]; n=len(o); st=n//len(ex); res=[]
        for i,m in enumerate(o):
            res.append(m)
            if i%st==st-1 and ex[i//st:i//st+1]: res.append(ex[i//st])
        for x in ex:
            if x not in res: res.append(x)
        return res
    def ilv(a,b):
        o=[]
        for i in range(max(len(a),len(b))): o+=a[i:i+1]+b[i:i+1]
        return o
    PRE={}; HN=[0]; spine=[]; rs=[]; fills=[]; tagf={}; stubs=[]
    def half(ms,waits=(),deps=(),dma=(),lg=False,bar=True,extra=(),dlo=1,dsp=None):
        st=len(spine); extra=list(extra)+ts(f"h{HN[0]}"); dma=list(dma)+PFH.get(HN[0],[]); HN[0]+=1
        if bar:
            dp=list(deps)
            for t in waits: dp+=tagf.get(t,[])
            pb_,w2=PRE.get(HN[0]-1,([],[])); waits=list(waits)+w2
            for t in w2: dp+=tagf.get(t,[])
            rs.append(([WaitVM(waits)]+pb_+([I("s_waitcnt lgkmcnt(0)")] if lg else [])+[I("s_barrier")]+list(extra),st,dp))
        for m in ms:
            m.i=len(spine); spine.append(m)
            for f in m.fr:
                if not getattr(f,"q",0): f.q=1; rs.append((f,m.i))
        en=len(spine); n=len(dma)
        if n:
            span=max((en-st-dlo-3)*(dsp or OPT['dsp'])//100,1)
            for k,p in enumerate(dma):
                lo=min(st+dlo+k*span//n,en-2); f=Fill(p,lo,min(lo+3,en-1),"dma"); fills.append(f)
                for x in p:
                    if x.tag is not None and x.kind=="vmem": tagf.setdefault(x.tag,[]).append(f)
        return st,en
    def F(txts,lo,hi,ch):
        f=Fill([I(t) if isinstance(t,str) else t for t in (txts if isinstance(txts,list) else [txts])],lo,hi,ch); fills.append(f); return f
    def maxch(S,n,tm):
        o=[f"v_max3_f32 {tm}, {S}, {off(S,1)}, {off(S,2)}"]
        for k in range(3,n-1,2): o.append(f"v_max3_f32 {tm}, {tm}, {off(S,k)}, {off(S,k+1)}")
        o.append(f"v_max_f32 {tm}, {tm}, {off(S,n-1)}"); return o
    def red(x,t,op,n16):
        o=[f"v_mov_b32 {t}, {x}","s_nop 0",f"v_permlane32_swap_b32 {x}, {t}",f"{op} {x}, {x}, {t}"]
        if n16: o+=[f"v_mov_b32 {t}, {x}","s_nop 0",f"v_permlane16_swap_b32 {x}, {t}",f"{op} {x}, {x}, {t}"]
        return o
    def check(S,n,tm,sub,lo,hi,ch):
        for x in maxch(S,n,tm): F(x,lo,hi,ch)
        k=len(stubs); stubs.append((k,sub))
        F([f"v_cmp_lt_f32 vcc, 0x41000000, {tm}",f"s_cbranch_vccnz L_fb{k}",Label(f"L_rt{k}")],lo,hi,ch)
    def init(S,n,tm,t,N,lo,hi,hi2,ch):
        for x in maxch(S,n,tm): F(x,lo,hi,ch)
        F(red(tm,t,"v_max_f32",n==4),lo,hi,ch)
        for k in range(n): F(f"v_sub_f32 {off(N,k)}, 0, {tm}",lo,hi,ch)
        for k in range(n): F(f"v_sub_f32 {off(S,k)}, {off(S,k)}, {tm}",lo,hi2,ch)
    def smx(S,n,lo,his,ch,first,la,lb):
        for k in range(0,n,2):
            hi=his[k//8]; a,b=off(S,k),off(S,k+1)
            F([f"v_exp_f32 {a}, {a}",f"v_exp_f32 {b}, {b}"],lo,hi,ch)
            z=first and k==0
            F([f"v_add_f32 {la}, {'0' if z else la}, {a}",f"v_add_f32 {lb}, {'0' if (z and la!=lb) else lb}, {b}",f"v_cvt_pk_bf16_f32 {off(S,(k//8)*8+(k%8)//2)}, {a}, {b}"],lo,hi,ch)
    tg=[0]
    def cvt8(src,n,mul,dst,lo,hi,ch):
        t=off(SA,8*(tg[0]%4)) if ch!="ep" else [SB,off(SB,8),NM,off(NM,8)][tg[0]%4]; tg[0]+=1
        for k in range(0,n,4): F([f"v_accvgpr_read_b32 {off(t,k+j)}, {off(src,k+j)}" for j in range(4)],lo,hi,ch)
        if mul:
            pm="s[2:3]" if mul==CSC else T(mul,2)
            for k in range(0,n,4): F([f"v_pk_mul_f32 {T(off(t,k+j),2)}, {T(off(t,k+j),2)}, {pm} op_sel_hi:[1,0]" for j in (0,2)] if OPT["pk"] else [f"v_mul_f32 {off(t,k+j)}, {mul}, {off(t,k+j)}" for j in range(4)],lo,hi,ch)
        d=dst or t
        F([f"v_cvt_pk_bf16_f32 {off(d,j)}, {off(t,2*j)}, {off(t,2*j+1)}" for j in range(n//2)],lo,hi,ch)
        return d
    def qlast(rnd,waits,dma,deps=(),sl=(G[1],G[2])):
        (a,ax),(b,bx)=mGQ(18,sl[0]),mGQ(19,sl[1]); ms=ilv(ax,a[0][:3])+ilv(bx,a[0][3:])
        for db in range(6): ms+=[a[1][db],b[0][db],b[1][db]]
        st,en=half(ms,waits,deps,dma)
        lo=bx[2].i+1; ws=[]
        F([f"v_lshrrev_b32 {T4}, 4, {vE}",f"v_and_b32 {T5}, 15, {T4}",f"v_mul_u32_u24 {T5}, 0x190, {T5}",f"v_bfe_u32 {T4}, {T4}, 4, 2"],st,en,"ep")
        F([f"v_lshl_add_u32 {T3}, {T4}, 4, {T5}",f"v_lshl_add_u32 {T4}, {T4}, 3, {T5}","s_mul_i32 s40, s32, 96",f"v_add_u32 {T4}, s40, {T4}",f"v_add_u32 {T3}, {hex(G[0])}, {T3}",f"v_add_u32 {T4}, {hex(G[0])}, {T4}"],st,en,"ep")
        for e_ in range(3):
            d=cvt8(off(GX,4*e_),4,CSC,None,lo,en,"ep"); ws.append(F(f"ds_write_b64 {T4}, {T(d,2)} offset:{32*e_}",lo,en,"ep"))
        for db in range(6):
            for u in range(2): cvt8(off(GA,16*db+8*u),8,CSC,off(Q,8*db+4*u),b[1][db].i+1,en+2*db+u,"ep")
        return ws
    def att(rnd,gl,dm,ws,wt):
        for it in range(8):
            n=2*it; t0=16*rnd+n; g=gl.get(n,[])
            a=mQK(it,0,"0" if it==0 else NM); b=mQK(it,1,NM); x=mQKx(it,"0" if it==0 else NX)
            ms=a+g[:3]+b+ilv(x,g[3:9])+g[9:] if g else a+x+b
            st,en=half(ms,[("T",t0)]+wt.get(n,[]),ws if it==0 else (),dm.get(n,[]),lg=it==0)
            if it==0:
                for t in range(6): F(f"ds_read_b128 {T(off(QX,4*t),4)}, {T3} offset:{64*t}",st,x[0].i-2,"qx")
            pa,pb,px=mPV(it,0),mPV(it,1,it==7),mPVx(it); g=gl.get(n+1,[])
            st2,en2=half(pa+g+pb+px if it<7 else pa+g+px+pb,[("T",t0+1)]+wt.get(n+1,[]),(),dm.get(n+1,[]))
            if it==0:
                init(SA,16,TM,T2,NM,a[-1].i+1,b[0].i,pa[0].i,"sm"); init(SX,4,TMX,T5,NX,x[-1].i+1,px[0].i,px[0].i,"sx")
            else:
                check(SA,16,TM,"L_FA",a[-1].i+1,b[0].i,"sm"); check(SX,4,TMX,"L_FX",x[-1].i+1,px[0].i,"sx")
            smx(SA,16,a[-1].i+1,[pa[0].i,pa[6].i],"sm",it==0,LA_,LB_)
            check(SB,16,TM,"L_FB",b[-1].i+1,pa[0].i,"sm")
            smx(SB,16,b[-1].i+1,[pb[0].i,pb[6 if it<7 else 1].i],"sm",False,LA_,LB_)
            smx(SX,4,x[-1].i+1,[px[0].i],"sx",it==0,LX,LX)
        lo=px[0].i
        F(red(LX,T5,"v_add_f32",True),lo,en2,"sx")
        F([f"v_bfe_u32 {T4}, {vE}, 4, 4",f"v_lshlrev_b32 {T4}, 3, {T4}",f"v_add_u32 {T4}, {hex(SP)}, {T4}","s_lshl_b32 s40, s32, 7",f"v_add_u32 {T5}, s40, {T4}",f"v_mov_b32 {off(NX,1)}, {LX}"],lo,en2,"sx")
        wml=F(f"ds_write_b64 {T5}, {T(NX,2)}",lo,en2,"sx")
        F([f"v_add_f32 {LA_}, {LA_}, {LB_}"]+red(LA_,T2,"v_add_f32",False)+[f"v_rcp_f32 {LA_}, {LA_}"],pb[1].i,en2,"sm")
        return wml,pb
    def epi(rnd,wml,pb,g3,dm3,wt3):
        ob=rnd*16*OITEM; st0,en0=half(g3[0],wt3[0],[wml],dm3[0],lg=True)
        m4=R(QX,8);
        F([f"ds_read_b64 {T(m4[2*k],2)}, {T4} offset:{128*k}" for k in range(4)],st0-1,en0,"ex")
        F([f"v_min3_f32 {T5}, {m4[0]}, {m4[2]}, {m4[4]}",f"v_min_f32 {T5}, {T5}, {m4[6]}"]+[f"v_sub_f32 {m4[2*k]}, {T5}, {m4[2*k]}" for k in range(4)]+[f"v_sub_f32 {T5}, {T5}, {NX}"],st0,en0,"ex")
        F([f"v_exp_f32 {m4[2*k]}, {m4[2*k]}" for k in range(4)]+[f"v_exp_f32 {T5}, {T5}"],st0,en0,"ex")
        F([f"v_mul_f32 {LX}, {m4[0]}, {m4[1]}"]+[f"v_fmac_f32 {LX}, {m4[2*k]}, {m4[2*k+1]}" for k in range(1,4)]+[f"v_rcp_f32 {LX}, {LX}",f"v_lshrrev_b32 {T4}, 1, {vE}",f"v_mul_f32 {LX}, {LX}, {T5}",
           f"v_add_u32 {T4}, {hex(V1-24576)}, {T4}",f"v_add_u32 {T5}, s33, {T4}","s_mul_i32 s40, s32, 1536",f"v_add_u32 {T4}, s40, {T4}"],st0,en0,"ex")
        wr=[]
        for b in range(12):
            d=cvt8(off(OX,4*b),4,LX,None,st0,en0,"ex"); wr.append(F(f"ds_write_b64 {T5}, {T(d,2)} offset:{512*b}",st0,en0,"ex"))
        sts=[]; sf=[]; cv={}
        hold=lambda s: off(Q,4*s) if rnd else off(Q,16+4*s) if s<8 else off(PB,36+4*(s-8))
        def mainc(ss,lo,hi):
            for s in ss:
                cvt8(off(O,8*s),8,LA_,hold(s),lo,hi(s),"ex")
                sts.append((hi(s),[f"s_add_u32 s41, s52, {hex(ob+(s//4)*4096)}",I(f"buffer_store_dwordx4 {T(hold(s),4)}, {vM}, {sWS}, s41 offen offset:{1024*(s%4)}{osc}",("O",rnd))]))
        n1=len(g3[1]); nm0=OPT.get("nm0",2)
        mainc(range(nm0),st0,lambda s:en0+2+2*s)
        st1,en1=half(g3[1],wt3[1],wr,dm3[1],lg=True)
        rds=[]; xw=[]; xs=[]
        if rnd: F([f"v_subrev_u32 {x}, {hex(GB-XB)}, {a}" for a,x in zip(rW[:1]+rWx,rK)]+[f"v_subrev_u32 {T3}, {hex(49152-45056)}, {vE}"],st1,en1-8,"ex")
        for e_ in range(3):
            rds.append(F([f"ds_read_b64 {T(m4[2*k],2)}, {T4} offset:{6144*k+512*e_}" for k in range(4)],st1-1,en1-6,"ex"))
            a=R(off(QX,8),8)
            for k in range(4):
                for j in range(2):
                    x,y=(a[2*j],a[2*j+1]) if k==0 else (a[4],a[5])
                    F([f"v_lshlrev_b32 {x}, 16, {m4[2*k+j]}",f"v_and_b32 {y}, 0xffff0000, {m4[2*k+j]}"]+([f"v_add_f32 {a[2*j]}, {a[2*j]}, {x}",f"v_add_f32 {a[2*j+1]}, {a[2*j+1]}, {y}"] if k else []),st1,en1-4,"ex")
            d=off(QX,16+2*e_)
            F([f"v_cvt_pk_bf16_f32 {d}, {a[0]}, {a[1]}",f"v_cvt_pk_bf16_f32 {off(d,1)}, {a[2]}, {a[3]}"],st1,en1-2,"ex")
            x=[f"s_add_u32 s40, s52, s{60+e_}",f"s_add_u32 s40, s40, {hex(ob)}",I(f"buffer_store_dwordx2 {T(d,2)}, {vE}, {sWS}, s40 offen{osc}",("O",rnd))]
            xs.append((en1-2,x))
            if rnd:
                xw.append(F([f"s_cmp_ge_u32 s{60+e_}, 0x1000","s_cselect_b32 s40, 0x5000, 0",f"s_add_u32 s40, s40, s{60+e_}",f"v_add_u32 {T2}, s40, {T3}",f"ds_write_b64 {T2}, {T(d,2)}"],st1,en1-1,"ex"))
        st2,en2=half(g3[2],wt3[2],rds+xw,dm3[2],lg=bool(rnd),dsp=25)
        if rnd: F([f"ds_read_b128 {T(off(QX,4*t),4)}, {T3} offset:{1024*t+(20480 if t>=4 else 0)}" for t in range(6)],st2,en2-2,"xr")
        mainc(range(nm0,12),st1,lambda s:en1+(en2-en1-2)*(s+1-nm0)//(12-nm0))
        if rnd:
            order=sts[:nm0]+xs+sts[nm0:]; p=st1; qxr=en2-2
            for k,(lo,x) in enumerate(order):
                p=max(p+OPT["ssp"],lo); hi=min(p+3,st2-1) if (lo,x) in xs else p+3
                sf.append(F(x,min(p,hi-1),hi,"st"))
            return sf,st2,en2
        qs=en2; nq=30
        p=st2+6; sp=OPT["ssp1"]
        for k,(lo,x) in enumerate(sts[:4]+xs+sts[4:]):
            s_=k if k<4 else k-3; lim=qs+nq-2 if 4<=k<7 else qs+14+3*(2+s_//2) if s_<8 else qs+nq+62
            p=min(max(p+sp,lo),lim-1); sf.append(F(x,p,min(p+3,lim),"st"))
        return sf,st2,en2
    NEARLY=0
    hs=[G[0],G[1],G[2],K0,K1,V0,V1]; slot={s:hs[s%7] for s in range(17)}; slot.update({17:K1,18:V1,19:G[1]})
    prog=pre0+pre1+ts("p1")+pre+ts("k")
    NP=OPT["npre"]
    for s in range(NP):
        for p in dmaQ(0,s,slot[s]): prog+=p
        tagf[("GQ",0,s)]=[]; prog+=ts(f"d{s}")
        if s==OPT.get("tlbp",NP-1) and OPT.get("tlb"):
            tl=str(OPT["tlb"]); tch=lambda r,o: I(f"buffer_load_dword off, {r}, {o} lds",("F",60))
            prog+=[I(f"s_mov_b32 m0, {hex(SP+512)}")]
            if "k" in tl: prog+=[tch(sK,0),tch(sV,0)]
            if "K" in tl: prog+=[I("s_mov_b32 s39, 3145728"),tch(sK,"s39"),tch(sV,"s39")]
            if "w" in tl: prog+=[I("s_mul_i32 s39, s97, 983040"),tch(sWo,"s39"),I("s_add_u32 s39, s39, 3932160"),tch(sWo,"s39")]
            if "o" in tl: prog+=[I(x) for x in ["s_lshl_b32 s39, s96, 3","s_add_u32 s39, s39, s98","s_lshl_b32 s38, s39, 3","s_add_u32 s38, s38, s97",f"s_mul_i32 s38, s38, {4*OITEM}"]]+[tch(sWS,"s38"),I(f"s_add_u32 s38, s38, {16*OITEM}"),tch(sWS,"s38")]+[I(x) for x in
                   ["s_lshl_b32 s38, s97, 4","s_add_u32 s38, s38, s39","s_lshl_b32 s38, s38, 2","s_add_u32 s38, s38, s99",f"s_mul_i32 s38, s38, {PT}",f"s_add_u32 s38, s38, {hex(PART)}"]]+[tch(sWS,"s38"),tch(sDB,0)]
        if s==min(1,NP-1): prog+=pre2
    pre3+=[I("s_nop 0"),I("s_lshl_b32 s3, s32, 13"),I("s_sub_u32 s3, s3, 0x60000")]
    grp=[[x] for x in pre3v]+[[]]
    for x in pre3:
        if x.txt=="s_nop 0": grp.append([])
        else: grp[-1].append(x)
    grp+=[[x] for x in wo_regs()]
    if NP==7:
        for g_ in grp: prog+=g_
    else:
        tot=sum(map(len,grp)); acc=0; e0=OPT.get("pe0",100)
        for g_ in grp:
            acc+=len(g_); F(g_,0,(8+52*acc//e0 if acc<e0 else 60+(acc-e0)*206//(tot-e0)),"pro")
    prog+=ts("wo"); nx=NP
    for s in range(18):
        d=[]
        while nx<=min(s+6,16) and len(d)<6*OPT["nper"]: d+=dmaQ(0,nx,slot[nx]); nx+=1
        d+={11:lambda:dmaT(0),12:lambda:dmaQ(0,17,K1),13:lambda:dmaT(1),14:lambda:dmaQ(0,18,V1),16:lambda:dmaQ(0,19,G[1])}.get(s,list)()
        half(flat(mGQ(s,slot[s])),[("GQ",0,s)],(),d,dsp=80 if len(d)>6 else None)
    assert nx==17
    ws=qlast(0,[("GQ",0,18),("GQ",0,19)],dmaT(2),sl=(V1,G[1]))
    gl={n:flat(mGQ(n-1,G[n%3])) for n in range(1,16)}
    dm={n:(dmaQ(1,0,G[1]) if n==0 else [])+dmaQ(1,n+1,G[(n+2)%3])+dmaT(n+3) for n in range(16)}
    wml,pb=att(0,gl,dm,ws,{n:[("GQ",1,n-1)] for n in range(1,16)})
    sf,st2,en2=epi(0,wml,pb,[flat(mGQ(15+k,G[(16+k)%3])) for k in range(3)],[dmaQ(1,17,G[0]),dmaQ(1,18,G[1]),dmaQ(1,19,G[2])+dmaT(19)],[[("GQ",1,15+k)] for k in range(3)])
    ws=qlast(1,[("GQ",1,18),("GQ",1,19)],[]); tagf[("O",0)]=sf
    en=len(spine)
    F([f"v_mov_b32 {a}, {b}" for a,b in zip(dO,HO[:5])],en-20,en-2,"dma")
    def pubI(rnd): return [I(f"v_mov_b32 {VP}, {hex(1<<(16*rnd))}"),I("s_mov_b64 exec, s[44:45]"),I(f"buffer_atomic_add {VP}, off, {sDB}, 0 sc1",("A",rnd)),I("s_mov_b64 exec, -1")]
    def polI(rnd): return [I(f"buffer_load_dword {VP}, off, {sDB}, 0 sc1",("P",rnd))]
    def chkI(rnd): return [I(f"v_readfirstlane_b32 s40, {VP}"),I(f"s_bfe_u32 s40, s40, {hex(0x100000|16*rnd)}"),I("s_cmp_lt_u32 s40, s57"),I(f"s_cbranch_scc1 L_sp{rnd}"),Label(f"L_pr{rnd}")]
    ps=USE+[16,17,18]+list(range(19,19+24-KT)); pos=[ps[IX[k]] for k in range(24)]; P0=OPT["pubh"]; P2=19+OPT["pub2"]; C2=19+OPT["pol2"]+1
    NH=pos[-1]+1; dB={n:[] for n in range(NH)}; dW_={n:[] for n in range(NH)}; dT={n:(dmaT(16+n+3) if 1<=n<=12 else []) for n in range(NH)}
    L=lambda x:[int(y) for y in str(x).split(".")]
    NB=L(OPT["nb"]); NW=L(OPT["nw"]); NB2=L(OPT["nb2"]); PH=NB[3]; wtx={}
    for j,k in enumerate(SEQ):
        nw0=[0,0,1][j] if j<3 else ps[j-3]+1 if j<KT else 13+j-KT if j<KT+3 else ps[j-6]+1
        nw=NW[j] if j<len(NW) else nw0
        assert nw0<=nw<pos[k],("W",k,nw0,nw); dW_[nw]+=dmaO(k)
        if 12<=k<15: continue
        nb0=P0+1 if k<3 else pos[k-3]+1 if k<12 else C2
        nb=(NB[k] if k<len(NB) else nb0) if k<12 else C2+NB2[k-15]
        assert nb0<=nb<pos[k] and (k<4 or nb>=PH),("B",k,nb0,nb)
        if k>=15 and OPT["wr"]: dB[nb]+=dmaE1(k); wtx[k]=[("B",100+k)]
        elif k>=15 and k%3==0: dB[nb]+=dmaE(k//3-4); wtx[k]=[("B",100+k//3-4)]
        dB[nb]+=ldB(k)
    H0=HN[0]; PRE[H0+PH]=(chkI(0),[("P",0)]); PRE[H0+C2]=(chkI(1),[("P",1)]); PRE[H0+P0+1]=([],[("O",0)]); PRE[H0+P2+1]=([],[("O",1)])
    dm={n:dB[n]+dW_[n]+dT[n] for n in range(NH)}
    dm[P0+1]=[pubI(0)]+dm[P0+1]; dm[PH-1]=[polI(0)]+dm[PH-1]; dm[P2+1]=[pubI(1)]+dm[P2+1]; dm[C2-1]=[polI(1)]+dm[C2-1] if OPT.get("pfirst",1) else dm[C2-1]+[polI(1)]
    assert P0+1<PH-1 and P2+1<=C2-1
    gl={n:flat(mGO(k)) for k,n in enumerate(USE)}
    i0=len(spine)
    F([f"v_mov_b32 {a}, {b}" for a,b in zip([rO]+rOx,HO[5:])],i0-1,i0+20,"mv")
    wml,pb=att(1,gl,dm,ws,{n:[("GO",k)] for k,n in enumerate(USE)})
    sf,st2,en2=epi(1,wml,pb,[flat(mGO(ND+k)) for k in range(3)],[dm[16+k] for k in range(3)],[[("GO",ND+k)] for k in range(3)])
    tagf[("O",1)]=sf
    MG=OPT["mrg"]
    for k in SEQ[KT:25-MG]:
        mn,ex=mGO(k); wt=[("GO",k)]+wtx.get(k,[])
        if k<24-MG: ms=flat((mn,ex))
        elif MG==1: ms=ilv(ex,mn[0]+[mn[1][0]])+[mn[2][0],mn[3][0]]+[mn[u][cb] for cb in range(1,5) for u in range(1,4)]
        else:
            for k2 in range(k+1,24):
                assert not dm[pos[k2]]; m2,e2=mGO(k2); mn=mn+m2; ex=ex+e2; wt+=[("GO",k2)]+wtx.get(k2,[])
            cm=[mn[u][cb] for cb in range(5) for u in range(4*MG)]; ms=ilv(cm[:len(ex)],ex)+cm[len(ex):]
        st,en=half(ms,wt,(),dm[pos[k]],dsp=70 if pos[k]==C2-1 else None)
    F(["s_lshl_b32 s40, s32, 11","s_mul_i32 s41, s32, 12288",f"v_subrev_u32 {T4}, s40, {vM}",f"v_subrev_u32 {T5}, s41, {vM}",f"v_lshrrev_b32 {T5}, 1, {T5}","s_lshl_b32 s40, s32, 9","s_add_u32 s60, s58, s40",
       "s_and_b32 s40, s40, 0x200","s_add_u32 s62, s58, s40"],st,en,"fin")
    def finx():
        for e_ in range(3):
            d=cvt8(off(GX,4*e_),4,None,None,ex[-1].i+1,en,"fin")
            F([f"s_add_u32 s40, {'s62' if e_==2 else 's60'}, {hex(40960+2048*e_)}",f"buffer_store_dwordx2 {T(d,2)}, {T5}, {sWS}, s40 offen{psc}"],ex[-1].i+1,en,"fin")
    for s in range(10):
        if s==(0 if MG==1 else 2 if MG==2 else 2): finx()
        lo=min(mn[-1][s//2].i+1,en-1); d=cvt8(off(GA,8*s),8,None,None,lo,en,"fin")
        F([f"s_add_u32 s40, s58, {hex((s//4)*4096)}",f"buffer_store_dwordx4 {T(d,4)}, {T4}, {sWS}, s40 offen offset:{1024*(s%4)}{psc}"],lo,en,"fin")
    rs.sort(key=lambda x:x[1])
    pa_=Pool(PA,7)
    if OPT.get("bigp"): pa_.free+=[off(PB,24+4*k) for k in range(6)]
    prog+=schedule(spine,rs,fills,{"A":pa_,"B":Pool(PB,6),"E":Pool(PB,4)},LA=OPT["LA"])
    kl=OPT["kill"]
    if kl:
        km={"F":"T","T":"T","GQ":"G","GO":"W","B":"B","O":"S","A":"P","P":"P"}
        prog=[x for x in prog if not(x.kind=="vmem" and x.tag and km[x.tag[0]] in kl) and not(x.txt.startswith("s_cbranch_vccnz")) and not("P" in kl and "L_sp" in x.txt)]
        if "C" in kl:
            k0=[i for i,x in enumerate(prog) if x.txt=="s_barrier"][0]
            def cf(x):
                if x.txt.startswith("ds_read_b128") or "tr_b16" in x.txt:
                    p=x.txt.split(); return I(f"{p[0]} {p[1]} {vE if 'b128' in p[0] else VP} offset:{int(p[3][7:])&0x3c00}")
                return x
            prog=prog[:k0]+[I(f"v_lshrrev_b32 {VP}, 1, {vE}")]+[cf(x) for x in prog[k0:]]
        if "Z" in kl: prog=[I("s_mov_b32 s39, 0") if x.txt.startswith("s_mov_b32 s39") else x for x in prog]
        if "Y" in kl: prog=[I(x.txt.replace(" lds","").replace("dwordx4 ","dwordx4 "+T(off(PB,48),4)+", "),None) if (x.kind=="vmem" and x.txt.endswith("lds")) else x for x in prog]
        if "N" in kl: OPT["nolg"]=1
        if "R" in kl: prog=[x for x in prog if x.txt!="s_barrier"]
        if "V" in kl: prog=[x for x in prog if not x.txt.startswith(("v_exp","v_max3","v_add_f32","v_cvt"))]
        if "L" in kl: prog=[x for x in prog if not x.txt.startswith("ds_read")]
    prog+=ts()
    if OPT["ts"]:
        prog+=[I("s_waitcnt lgkmcnt(0)"),I("s_lshl_b32 s40, s63, 8"),I(f"s_add_u32 s40, s40, {hex(64<<20)}"),I("s_lshl_b32 s41, s32, 6"),I("s_add_u32 s40, s40, s41"),I("s_mov_b64 exec, 1")]
        for k in range(TS[0]): prog+=[I(f"v_mov_b32 {T2}, s{64+2*k}"),I(f"buffer_store_dword {T2}, off, {sWS}, s40 offset:{4*k}")]
    prog+=[Label("L_end"),I("s_endpgm")]
    st={}; out=finalize(prog,age=OPT.get("age",96),stats=st); print("k1",st,"mfma",len(spine),"cyc",sum(m.dur for m in spine),file=sys.stderr)
    txt=[x.txt for x in out]
    if OPT.get("nolg"): k0=txt.index("s_barrier"); txt=txt[:k0]+[x for x in txt[k0:-40] if "lgkmcnt" not in x]+txt[-40:]
    for k,sub in stubs: txt+=[f"L_fb{k}:",f"s_call_b64 s[46:47], {sub}",f"s_branch L_rt{k}"]
    for nm,S,N,n,tm,t,acc,na,ls in (("L_FA",SA,NM,16,TM,T2,O,96,[LA_,LB_]),("L_FB",SB,NM,16,TM,T2,O,96,[LA_,LB_]),("L_FX",SX,NX,4,TMX,T5,OX,48,[LX])):
        p=["s_nop 15","s_nop 15"]+red(tm,t,"v_max_f32",n==4)+[f"v_max_f32 {tm}, 0, {tm}"]
        p+=[f"v_sub_f32 {off(S,k)}, {off(S,k)}, {tm}" for k in range(n)]+[f"v_sub_f32 {off(N,k)}, {off(N,k)}, {tm}" for k in range(n)]
        p+=[f"v_exp_f32 {tm}, -{tm}","s_nop 1"]+[f"v_mul_f32 {x}, {x}, {tm}" for x in ls]
        for k in range(na): p+=[f"v_accvgpr_read_b32 {t}, {off(acc,k)}",f"v_mul_f32 {t}, {t}, {tm}",f"v_accvgpr_write_b32 {off(acc,k)}, {t}"]
        if nm=="L_FB":
            for r in R(SA,4)+R(off(SA,8),4):
                p+=[f"v_lshlrev_b32 {t}, 16, {r}",f"v_and_b32 {r}, 0xffff0000, {r}",f"v_mul_f32 {t}, {t}, {tm}",f"v_mul_f32 {r}, {r}, {tm}",f"v_cvt_pk_bf16_f32 {r}, {t}, {r}"]
        txt+=[nm+":"]+[x.txt for x in finalize([I(x) for x in p])]+["s_nop 3","s_setpc_b64 s[46:47]"]
    for r in range(2):
        txt+=[f"L_sp{r}:","s_sleep 4",f"buffer_load_dword {VP}, off, {sDB}, 0 sc1","s_waitcnt vmcnt(0)",f"v_readfirstlane_b32 s40, {VP}","s_nop 0",f"s_bfe_u32 s40, s40, {hex(0x100000|16*r)}","s_cmp_lt_u32 s40, s57",f"s_cbranch_scc1 L_sp{r}",f"s_branch L_pr{r}"]
    return txt+["L_last:"]

def k2():
    kl=SCM[OPT['k2l']]; ks_=SCM[OPT['k2s']]
    p=["s_cmp_ge_u32 s2, 0x100","s_cbranch_scc1 L_end2","s_load_dwordx2 s[4:5], s[0:1], 96","s_load_dwordx2 s[8:9], s[0:1], 80",
       "v_lshrrev_b32 v1, 6, v0","v_and_b32 v0, 63, v0","s_lshr_b32 s13, s2, 2","s_and_b32 s14, s2, 3","v_readfirstlane_b32 s12, v1",
       f"s_mul_i32 s15, s13, {PT}",f"s_add_u32 s15, s15, {hex(PART)}","s_mul_i32 s16, s14, 10240","s_lshl_b32 s17, s12, 11","s_add_u32 s16, s16, s17","s_add_u32 s16, s16, s15",
       "v_lshlrev_b32 v2, 4, v0","s_mov_b32 s6, 0x10000000","s_mov_b32 s7, 0x20000","s_mov_b32 s10, 2949120","s_mov_b32 s11, 0x20000","s_waitcnt lgkmcnt(0)"]
    for ks in range(4):
        p+=[f"buffer_load_dwordx4 v[{8+8*ks}:{11+8*ks}], v2, s[4:7], s16 offen{kl}",f"buffer_load_dwordx4 v[{12+8*ks}:{15+8*ks}], v2, s[4:7], s16 offen offset:1024{kl}",f"s_add_u32 s16, s16, {64*PT}"]
    p+=["s_and_b32 s18, s14, 1","s_mul_i32 s18, s18, 5","s_add_u32 s18, s18, s12","s_lshl_b32 s19, s18, 9","s_add_u32 s19, s19, s15","s_add_u32 s19, s19, 40960","v_lshlrev_b32 v3, 3, v0"]
    for ks in range(4): p+=[f"buffer_load_dwordx2 v[{40+2*ks}:{41+2*ks}], v3, s[4:7], s19 offen{kl}",f"s_add_u32 s19, s19, {64*PT}"]
    p+=["s_bfe_u32 s20, s13, 0x30002","s_mul_i32 s20, s20, 368640","s_lshr_b32 s21, s13, 5","s_mul_i32 s21, s21, 1280","s_add_u32 s20, s20, s21","s_and_b32 s21, s13, 3","s_mul_i32 s21, s21, 320","s_add_u32 s20, s20, s21",
        "s_mul_i32 s21, s14, 81920","s_add_u32 s21, s21, s20","s_lshl_b32 s22, s12, 6","s_add_u32 s21, s21, s22",
        "v_and_b32 v4, 31, v0","v_mul_u32_u24 v4, 0xa00, v4","v_lshrrev_b32 v5, 5, v0","v_lshl_add_u32 v4, v5, 4, v4",
        "s_lshl_b32 s22, s18, 5","s_add_u32 s22, s22, s20","s_add_u32 s22, s22, 327680",
        "v_and_b32 v5, 15, v0","v_mul_u32_u24 v5, 0xa00, v5","v_lshrrev_b32 v6, 4, v0","v_lshl_add_u32 v5, v6, 3, v5"]
    def summ(b,st,j):
        o=[f"v_lshlrev_b32 v6, 16, v{b+j}",f"v_and_b32 v7, 0xffff0000, v{b+j}"]
        for ks in range(1,4): r=b+st*ks+j; o+=[f"v_lshlrev_b32 v1, 16, v{r}",f"v_and_b32 v{r}, 0xffff0000, v{r}","v_add_f32 v6, v6, v1",f"v_add_f32 v7, v7, v{r}"]
        return o+[f"v_cvt_pk_bf16_f32 v{b+j}, v6, v7"]
    for u in range(2):
        for j in range(4): p+=summ(8+4*u,8,j)
        p.append(f"buffer_store_dwordx4 v[{8+4*u}:{11+4*u}], v4, s[8:11], s21 offen offset:{32*u}{ks_}")
    p+=["s_cmp_ge_u32 s14, 2","s_cbranch_scc1 L_end2"]+summ(40,2,0)+summ(40,2,1)+[f"buffer_store_dwordx2 v[40:41], v5, s[8:11], s22 offen{ks_}"]
    return [x.txt for x in finalize([I(x) for x in p])]+["L_end2:","s_endpgm"]

ref=open(f"cdna_kernels/{NAME}.s.ref").read().split("\n")
hdr=[x for x in ref if x.startswith(";") and "@launch" not in x and "Override" not in x and "grid=ceil" not in x]
o=hdr+[f"; @launch kernel={NAME}_kernel grid=(256,1,1) block=(256,1,1) lds=163840",*([] if OPT.get("nok2") else ["; @launch kernel=reduce_kernel grid=(256,1,1) block=(320,1,1) lds=0"]),'.amdgcn_target "amdgcn-amd-amdhsa--gfx950"',".text"]
for nm,body in ((NAME+"_kernel",k1()),("reduce_kernel",k2())):
    o+=[f".globl {nm}",".p2align 8",f".type {nm},@function",nm+":"]+body
o.append('.section .rodata,"a"')
for nm,nv,ao in ((NAME+"_kernel",512,256),("reduce_kernel",48,48)):
    o+=[".p2align 6",f".amdhsa_kernel {nm}",f"  .amdhsa_next_free_vgpr {nv}","  .amdhsa_next_free_sgpr 102",f"  .amdhsa_accum_offset {ao}","  .amdhsa_group_segment_fixed_size 0",
        "  .amdhsa_kernarg_size 104","  .amdhsa_user_sgpr_count 2","  .amdhsa_user_sgpr_kernarg_segment_ptr 1","  .amdhsa_system_sgpr_workgroup_id_x 1",".end_amdhsa_kernel"]
open(sys.argv[1],"w").write("\n".join(o)+"\n")
```

```python
import sys, numpy as np
from asmlib import *
from vexpr import Ctx, E, SV
NAME="concat_heads__gqa_block_cached__gqa_block_cached__near_ridge"
OPT=dict(ts=0, LA=200, ntw=0, ntx=0, kill="", dcost=8, pf=1, bsc=1, dsp=50, pubh=2, use="5.6.8.10.12.14", nb="3.4.6.8.10.12.13.14.15", nw="0.2.5.7.9.11.13.14.15", nb2="0.0.0.1.1.2.2.3.3", pub2=1, pol2=4, pk=1, ssp=4, own1=1, wr=2, psc=1, xp=1, nmf=0, com=0, mrg=3, k2s=0, k2l=0, pe0=260, ssp1=6, krot=0, osc=1, pfk=0, pf0=60, pfd=27, pfn=0, tnt=1, h0t=100, npre=3, nper=2)
for a in sys.argv[2:]:
    k,v=a.split("="); OPT[k]=int(v) if v.lstrip("-").isdigit() else v
M32="v_mfma_f32_32x32x16_bf16"; M16="v_mfma_f32_16x16x32_bf16"; M16S="v_mfma_f32_16x16x16_bf16"
K0,K1,V0,V1=0,24576,49152,73728; GB=98304; G=[GB,GB+21504,GB+43008]; SP=162816
OITEM=55296; PART=32<<20; PT=46080
_v=[0]
def va(n,al=1):
    _v[0]=(_v[0]+al-1)//al*al; r=f"v{_v[0]}"; _v[0]+=n; return r
Q=va(48,4); QX=va(24,4); SA=va(16,4); SB=va(16,4); SX=va(4,4); NM=va(16,4); NX=va(4,4)
PA=va(28,4); PB=va(52,4)
dK=[va(1) for _ in range(6)]; dV=[va(1) for _ in range(3)]
rK=[va(1) for _ in range(4)]; rKx=[va(1) for _ in range(2)]; rV=[va(1) for _ in range(2)]; rVx=[va(1) for _ in range(4)]
dW=[va(1) for _ in range(3)]; dX=[va(1) for _ in range(3)]
rW=[va(1) for _ in range(2)]; rWx=[va(1) for _ in range(3)]; rX=[va(1) for _ in range(2)]; rXx=va(1)
dO=dW+dX[:2]; rO=rW[0]; rOx=rWx
vM=va(1); vE=va(1); LA_=va(1,2); LB_=va(1); LX=va(1,2); TM=va(1); T2=va(1); T3=va(1); TMX=va(1); VP=va(1); T4=va(1); T5=va(1)
assert _v[0]<=256,_v
O="a0"; OX="a96"; GA="a144"; GX="a240"
BSET=[[off(PB,4*k) for k in range(6)],[off(PB,24+4*k) for k in range(6)],[off(PB,48)]+["a224","a228","a232","a236","a252"]]
sK,sV,sWq,sX,sWo,sWS,sDB="s[4:7]","s[8:11]","s[12:15]","s[16:19]","s[20:23]","s[24:27]","s[28:31]"
CSC=hex(int(np.float32(192**-0.5*np.log2(np.e)).view(np.uint32)))
def srd(pre,r,base,adds,size):
    if adds: pre+= [I(f"s_add_u32 s{r}, s{base}, {adds}"),I(f"s_addc_u32 s{r+1}, s{base+1}, 0"),I(f"s_sub_u32 s{r+2}, {hex(size)}, {adds}")]
    else: pre+=[I(f"s_mov_b32 s{r}, s{base}"),I(f"s_mov_b32 s{r+1}, s{base+1}"),I(f"s_mov_b32 s{r+2}, {hex(size)}")]
    pre.append(I(f"s_mov_b32 s{r+3}, 0x20000"))
TS=[0]
def ts(nm=None):
    if not OPT["ts"] or (nm and nm not in str(OPT.get("tsl","h0.h10.h19.h27.h35.h39.h47.h55.h58")).split(".")): return []
    k=TS[0]; TS[0]+=1; assert k<(5 if OPT['wr'] else 16)
    return [I(f"s_memtime s[{64+2*k}:{65+2*k}]")]

SCM=['',' sc1',' nt',' sc0 sc1',' sc1 nt']
def k1():
    pre=[I("s_cmp_ge_u32 s2, 0x100"),I("s_cbranch_scc1 L_end")]+ts()
    if OPT["pf"]:
        pre+=[I("s_getpc_b64 s[4:5]"),Label("L_pc"),I("s_lshr_b32 s3, s2, 3"),I("s_lshl_b32 s3, s3, 12"),I(f"v_lshl_add_u32 {SX}, v0, 4, s3"),I(f"v_min_u32 {SX}, {'L_end2' if OPT.get('pf2',1) else 'L_last'}-L_pc-16, {SX}"),
              I(f"global_load_dwordx4 {T(SX,4)}, {SX}, s[4:5]")]
    if OPT.get("rot"): pre+=[I("s_lshl_b32 s3, s2, 5"),I("s_lshr_b32 s2, s2, 3"),I("s_or_b32 s2, s2, s3"),I("s_and_b32 s2, s2, 255")]
    pre+=[I("s_load_dwordx8 s[40:47], s[0:1], 0"),I("s_load_dwordx2 s[48:49], s[0:1], 32"),
          I("s_load_dwordx2 s[50:51], s[0:1], 40"),I("s_load_dwordx4 s[52:55], s[0:1], 48"),I("s_load_dwordx4 s[56:59], s[0:1], 64"),
          I("s_load_dwordx2 s[60:61], s[0:1], 88"),I("s_load_dwordx2 s[62:63], s[0:1], 96")]
    pre+=[I(x) for x in ["v_lshrrev_b32 v1, 6, v0","s_and_b32 s97, s2, 3","s_bfe_u32 s96, s2, 0x10002","s_bfe_u32 s98, s2, 0x30003","s_lshr_b32 s99, s2, 6",
          "v_readfirstlane_b32 s32, v1","s_lshl_b32 s100, s97, 2","s_add_u32 s100, s100, s99",
          *[["s_mov_b32 s37, 0"],["s_mul_i32 s37, s98, 5","s_lshr_b32 s37, s37, 1","s_mul_i32 s101, s99, 5","s_add_u32 s37, s37, s101"],["s_and_b32 s37, s98, 1","s_mul_i32 s37, s37, 10"],["s_and_b32 s37, s98, 3","s_mul_i32 s37, s37, 5"],["s_and_b32 s37, s98, 1","s_mul_i32 s37, s37, 2"],["s_add_u32 s37, s98, s99","s_and_b32 s37, s37, 3","s_lshl_b32 s37, s37, 1"]][OPT.get("rotm",1)],
          "s_cmp_ge_u32 s37, 20","s_cselect_b32 s101, 20, 0","s_sub_u32 s37, s37, s101","s_lshl_b32 s37, s37, 6",
          "s_mul_i32 s33, s32, 6144","s_mul_i32 s34, s32, 3072","s_lshl_b32 s35, s32, 11","s_mul_i32 s36, s32, 5120",
          ]]; pre0=pre; pre=[I(x) for x in ["s_waitcnt lgkmcnt(0)","s_cmp_eq_u32 s96, 0","s_cselect_b64 s[40:41], s[40:41], s[50:51]","s_cselect_b64 s[42:43], s[42:43], s[52:53]",
          "s_cselect_b64 s[44:45], s[44:45], s[54:55]","s_cselect_b64 s[46:47], s[46:47], s[56:57]","s_cselect_b64 s[48:49], s[48:49], s[58:59]",
          "s_mul_i32 s101, s100, 384"]]
    srd(pre,12,46,"s101",7864320)
    pre.append(I("s_mul_i32 s101, s98, 184320")); srd(pre,16,40,"s101",1474560)
    pre+=[I("s_lshl_b32 s101, s98, 5"),I("s_add_u32 s101, s101, s100"),I("s_mul_i32 s101, s101, 196608")]
    srd(pre,4,42,"s101",50331648); srd(pre,8,44,"s101",50331648)
    pre.append(I("s_mul_i32 s101, s99, 320")); srd(pre,20,48,"s101",7864320)
    srd(pre,24,62,None,268435456); srd(pre,28,60,None,256); pre.append(I("s_mov_b32 s63, s2"))
    pre+=[I(x) for x in ["s_lshl_b32 s101, s32, 4","s_mov_b64 s[42:43], 0xffff","s_lshl_b64 s[42:43], s[42:43], s101"]]
    tid=np.arange(256); w_=tid>>6; l_=tid&63
    SV.update(s32=w_,s33=w_*6144,s35=w_*2048)
    c=Ctx(R(Q,40)); chk=[]
    l=(E(c,"v0",tid,False)&63).keep(); w=E(c,"v1",w_,False)
    wv=(w+0|0).keep()
    c.free=[r for r in c.free if r not in("v0","v1")]
    def div(q,n): return (q*(2731 if n==24 else 3277))>>16
    for j in range(3):
        q=(l+64*j|0).keep(); r=div(q,24).keep(); pc=(q-r*24); sw=((r&2)<<1)|((wv&1)<<1)
        e=(((wv<<3)+r)*12288+((pc^sw)<<4)-1024*j).to(dW[j]); q.drop(); r.drop()
        qq=64*j+l_; rr_=8*w_+qq//24; chk.append((e,rr_*12288+((qq%24)^((((rr_>>1)&1)<<2)|(((rr_>>3)&1)<<1)))*16-1024*j))
    xc=(((l&3)^((l>>4)&3))<<4).keep()
    e=(((wv<<5)+(l>>2))*1280+xc).to(dX[0]); chk.append((e,(32*w_+(l_>>2))*1280+((l_&3)^((l_>>4)&3))*16))
    (e+(16*1280-1024)).to(dX[1]); ((l>>2)*1280+xc+128*1280).to(dX[2]); xc.drop()
    pre1=c.out; c.out=[]
    rr=((l>>2)&3).keep(); cc=(l&3).keep(); h=(l>>5).keep(); g=(l>>4).keep(); Gg=(g&1).keep(); q16=(l&15).keep(); r32=(l&31).keep()
    rr_,cc_,h_,g_,G_=(l_>>2)&3,l_&3,l_>>5,l_>>4,(l_>>4)&1
    for d in range(2):
        e=(((h<<3)+rr)*384+(((((Gg<<1)+(cc&1))+4*d)^(((rr&2)<<1)|(h<<1)))<<4)+((cc>>1)<<3)+GB).to(rW[d])
        chk.append((e,GB+(8*h_+rr_)*384+((4*d+2*G_+(cc_&1))^(4*(rr_>>1)|2*h_))*16+8*(cc_>>1)))
    for e_ in range(3):
        e=(((g<<3)+rr)*384+(((((wv*3+e_)<<1)+(cc>>1))^(((rr&2)<<1)|(Gg<<1)))<<4)+((cc&1)<<3)+GB).to(rWx[e_])
        chk.append((e,GB+(8*g_+rr_)*384+((2*(3*w_+e_)+(cc_>>1))^(4*(rr_>>1)|2*G_))*16+8*(cc_&1)))
    for u in range(2):
        e=((r32<<6)+(((h+2*u|0)^((r32>>2)&3))<<4)+"s35"+(GB+12288)).to(rX[u])
        chk.append((e,GB+12288+2048*w_+(l_&31)*64+((2*u+h_)^(((l_&31)>>2)&3))*16))
    e=((q16<<6)+((g^(q16>>2))<<4)+(GB+20480)).to(rXx); chk.append((e,GB+20480+(l_&15)*64+(g_^((l_&15)>>2))*16))
    gs=rW+rWx+rX+[rXx]; alt={GB:gs,0:R(SA,8),V0:R(off(PB,36),8)}
    for b in (0,V0):
        for a,x in zip(gs,alt[b]): c.out.append(I(f"v_subrev_u32 {x}, {hex(GB-b)}, {a}"))
    pre2=c.out; c.out=[]
    for j in range(6):
        r=div(l+64*j|0,24); e=(((l^((r>>1)&7))<<4)+"s33"+(4096 if j>=4 else 0)).to(dK[j])
        chk.append((e,16*(l_^((((64*j+l_)//24)>>1)&7))+6144*w_+(4096 if j>=4 else 0)))
    for j in range(3):
        r=div(l+64*j|0,24).keep(); e=(((l^(((r&2)<<1)|((r&4)>>1)))<<4)+"s33").to(dV[j]); r.drop()
        r_=(64*j+l_)//24; chk.append((e,16*(l_^((((r_>>1)&1)<<2)|(((r_>>2)&1)<<1)))+6144*w_))
    for m in range(4):
        e=(r32*384+(((h+2*m|0)^((r32>>1)&7))<<4)).to(rK[m]); chk.append((e,(l_&31)*384+((2*m+h_)^(((l_&31)>>1)&7))*16))
    for t in range(2):
        e=(q16*384+(((g+4*t|0)^(q16>>1))<<4)+"s33").to(rKx[t]); chk.append((e,(16*w_+(l_&15))*384+((4*t+g_)^((l_&15)>>1))*16))
    for d in range(2):
        e=(((h<<2)+rr)*384+(((((Gg<<1)+(cc>>1))+4*d)^(((rr&2)<<1)|(h<<1)))<<4)+((cc&1)<<3)+V0).to(rV[d])
        chk.append((e,V0+(4*h_+rr_)*384+((4*d+2*G_+(cc_>>1))^(4*(rr_>>1)|2*h_))*16+8*(cc_&1)))
    for k in range(4):
        e=(((g<<2)+rr)*384+((((cc>>1)+2*k)^(((rr&2)<<1)|(Gg<<1)))<<4)+((cc&1)<<3)+"s33"+V0).to(rVx[k])
        chk.append((e,V0+(16*w_+4*g_+rr_)*384+((2*k+(cc_>>1))^(4*(rr_>>1)|2*G_))*16+8*(cc_&1)))
    (wv*12288+(l<<4)).to(vM); ((l<<4)+49152).to(vE)
    pre3v=c.out; pre3=[]
    for e,ref in chk: assert (e.val==(ref&0xffffffff)).all(), e.reg
    pre3+=[I(x) for x in [["s_mov_b32 s56, 0","s_add_u32 s56, s98, s99","s_add_u32 s56, s63, s98","s_mov_b32 s56, s63"][OPT["krot"]],f"s_mov_b32 s2, {CSC}","s_mov_b64 s[44:45], 1","s_lshl_b32 s101, s96, 3","s_add_u32 s101, s101, s98","s_lshl_b32 s57, s101, 2","s_add_u32 s57, s57, s97","s_lshl_b32 s57, s57, 2","s_add_u32 s28, s28, s57","s_addc_u32 s29, s29, 0","s_cmp_eq_u32 s32, 0","s_cselect_b32 s30, 4, 0","s_mov_b32 s57, s30",
        "s_nop 0","s_lshl_b32 s58, s97, 4","s_add_u32 s58, s58, s101","s_lshl_b32 s58, s58, 2","s_add_u32 s58, s58, s99",f"s_mul_i32 s58, s58, {PT}",f"s_add_u32 s58, s58, {hex(PART)}",
        "s_lshl_b32 s101, s101, 5"]]
    for i in range(4):
        pre3+=[I(x) for x in ["s_nop 0",f"s_add_u32 s40, s99, {i}","s_and_b32 s40, s40, 3","s_lshl_b32 s41, s97, 2","s_add_u32 s40, s40, s41",f"s_mul_i32 s{48+i}, s40, {192*1280}",
               "s_add_u32 s40, s40, s101",f"s_mul_i32 s{52+i}, s40, {OITEM}"]]
    if OPT["com"]: pre3+=[I(x) for x in ["s_nop 0","s_mul_i32 s49, s97, 983040","s_lshl2_add_u32 s40, s97, s101",f"s_mul_i32 s53, s40, {OITEM}"]]
    if OPT["wr"]:
        for j in range(9):
            pre3+=[I(x) for x in ["s_nop 0",f"s_add_u32 s40, s98, {j}","s_cmp_ge_u32 s40, 9","s_cselect_b32 s41, 9, 0","s_sub_u32 s40, s40, s41","s_mul_i32 s41, s40, 43","s_lshr_b32 s41, s41, 7","s_mul_i32 s74, s41, 3","s_sub_u32 s40, s40, s74",
                "s_nop 0","s_add_u32 s41, s41, s99","s_add_u32 s41, s41, 1","s_and_b32 s41, s41, 3","s_lshl2_add_u32 s41, s97, s41",f"s_mul_i32 s{78+j}, s41, 245760","s_mul_i32 s74, s40, 81920",f"s_add_u32 s{78+j}, s{78+j}, s74",
                "s_nop 0","s_add_u32 s41, s41, s101",f"s_mul_i32 s{87+j}, s41, {OITEM}","s_lshl_b32 s74, s40, 12",f"s_add_u32 s{87+j}, s{87+j}, s74"]+([f"s_lshl_b32 s{75+j}, s40, 11"] if j<3 else [])]
    for e_ in range(3):
        pre3+=[I(x) for x in ["s_nop 0","s_mul_i32 s40, s32, 3",f"s_add_u32 s40, s40, {e_}","s_and_b32 s41, s40, 1","s_lshr_b32 s40, s40, 1","s_lshl_b32 s40, s40, 10","s_lshl_b32 s41, s41, 3",f"s_add_u32 s{60+e_}, s40, s41"]]
    if OPT["xp"]: pre3+=[I(x) for x in ["s_nop 0","s_lshl_b32 s60, s32, 10","s_and_b32 s61, s60, 0x400","s_add_u32 s61, s61, 0x1000","s_cmp_lt_u32 s32, 2","s_cselect_b32 s62, -1, 0"]]
    HO=R(off(PB,24),9)
    def wo_regs():
        c=Ctx(R(QX,24)); ck=[]; dO=HO[:5]; rO=HO[5]; rOx=HO[6:9]
        l=((E(c,vE,16*l_+49152,False)>>4)&63).keep(); wv=((l&0)+"s32").keep()
        for j in range(5):
            q=(l+64*j|0).keep(); r=div(q,20).keep(); pc=q-r*20
            e=(((wv<<4)+r)*1280+((pc^((r&4)>>1))<<4)-1024*(j%4)).to(dO[j]); q.drop(); r.drop()
            qq=64*j+l_; r_=qq//20; ck.append((e,(16*w_+r_)*1280+((qq%20)^(((r_>>2)&1)<<1))*16-1024*(j%4)))
        rr=((l>>2)&3).keep(); h=(l>>5).keep(); g=(l>>4).keep(); Gg=(g&1).keep()
        e=(((h<<2)+rr)*320+((((Gg<<1)+(l&1))^(h<<1))<<4)+((l&2)<<2)+GB).to(rO); ck.append((e,GB+(4*h_+rr_)*320+((2*G_+(cc_&1))^(2*h_))*16+8*(cc_>>1)))
        base=(((g<<2)+rr)*320+((l&1)<<3)+GB).keep(); lo=((l>>1)&1).keep()
        for e_ in range(3):
            blk=wv+4*e_ if e_<2 else (wv&1)+8
            e=(base+((((blk<<1)+lo)^(Gg<<1))<<4)).to(rOx[e_]); b_=w_+4*e_ if e_<2 else (w_&1)+8
            ck.append((e,GB+(4*g_+rr_)*320+((2*b_+(cc_>>1))^(2*G_))*16+8*(cc_&1)))
        for e,ref in ck: assert (e.val==(ref&0xffffffff)).all(), e.reg
        return c.out
    def D(txt,tag): i=I(txt,tag); i.cost=OPT["dcost"]; return i
    def m0(s,c_): return I(f"s_add_u32 m0, {s}, {hex(c_)}")
    ntw=" nt" if OPT["ntw"] else ""; ntx=" nt" if OPT["ntx"] else ""
    bsc=["",' sc1',' nt',' sc0'][OPT["bsc"]]
    def sof(t,c_):
        if not OPT["krot"]: return [I(f"s_mov_b32 s39, {hex((t//16)*3145728+((t%16)//2)*24576+c_)}")]
        return [I(f"s_add_u32 s39, s56, {(t%16)//2}"),I("s_and_b32 s39, s39, 7"),I("s_mul_i32 s39, s39, 24576")]+([I("s_add_u32 s39, s39, 3145728")] if t>=16 else [])
    psc=SCM[OPT["psc"]]
    osc=["",' sc1',' sc1 nt',' nt',' sc0 sc1'][OPT["osc"]]
    tnt=" nt" if OPT["tnt"] else ""
    def pfU(u):
        so=(u//12)*3145728+((u%12)//2)*32768
        return [I(f"v_lshl_add_u32 {VP}, {vE}, 3, s3"),I(f"s_mov_b32 m0, {hex(SP+512)}"),I(f"s_mov_b32 s39, {hex(so)}"),D(f"buffer_load_dword {VP}, {[sK,sV][u%2]}, s39 offen{' nt' if OPT['pfn'] else ''} lds",("F",u))]
    PFH={}
    if OPT["pfk"]:
        TM_=lambda h: OPT["h0t"]+6.5*h if h<=18 else OPT["h0t"]+125+16*(h-19) if h<35 else OPT["h0t"]+381+14*(h-35) if h<39 else OPT["h0t"]+437+17*(h-39)
        TH=lambda t: 11 if t==0 else 13 if t==1 else 18 if t==2 else 16+t if t<=18 else 37 if t==19 else 20+t
        for u in range(24):
            tau=OPT["pf0"]+OPT["pfd"]*u; h=-1 if tau<OPT["h0t"] else min(x for x in range(60) if TM_(x+1)>tau)
            if h in (39+OPT["pubh"]+1,39+int(str(OPT["nb"]).split(".")[3])-1): h+=1
            i=-(-((u%12)//2)*4//3) if 0 else (((u%12)//2)*4)//3; t=16*(u//12)+2*i+u%2
            tl=16*(u//12)+2*min(7,(((u%12)//2+1)*4-1)//3)+u%2
            if h<TH(tl)-OPT.get("pfm",1): PFH.setdefault(h,[]).append(pfU(u))
        print({h:len(v) for h,v in PFH.items()},file=sys.stderr)
    for r_,k_ in ((0,"wp1"),(1,"wp2")):
        if OPT.get(k_) is not None:
            PFH.setdefault(OPT[k_],[]).append([I(f"v_lshl_add_u32 {VP}, {vE}, 3, s3"),I(f"s_mov_b32 m0, {hex(SP+512)}"),I("s_lshr_b32 s39, s63, 3"),I("s_lshl_b32 s40, s97, 5"),I("s_add_u32 s39, s39, s40"),I("s_mul_i32 s39, s39, 30720")]
                +([I(f"s_add_u32 s39, s39, {16*192*1280}"),I(f"s_min_u32 s39, s39, {7864320-32768-960}")] if r_ else [])+[D(f"buffer_load_dword {VP}, {sWo}, s39 offen lds",("F",50+r_))])
    def dmaT(t):
        so=(t//16)*3145728+((t%16)//2)*24576; slot=[K0,V0,K1,V1][t%4]; tg=("T",t); o=[]
        for j in range(6):
            p=[]
            if t%2==0:
                if j in(0,4): p.append(m0("s33",slot+(4096 if j else 0)))
                if j==0: p+=sof(t,0)
                p.append(D(f"buffer_load_dwordx4 {dK[j]}, {sK}, s39 offen offset:{1024*(j%4)}{tnt} lds",tg))
            else:
                if j in(0,3): p+=[m0("s33",slot+1024*j)]+(sof(t,0) if j==0 else [I("s_add_u32 s39, s39, 0xc00")])
                p.append(D(f"buffer_load_dwordx4 {dV[j%3]}, {sV}, s39 offen offset:{1024*(j%3)}{tnt} lds",tg))
            o.append(p)
        return o
    def dmaQ(rnd,s,slot):
        tg=("GQ",rnd,s); o=[]
        p=[m0("s34",slot)]
        if not(rnd==0 and s==0): p+=[I("s_add_u32 s37, s37, 64"),I("s_cmp_eq_u32 s37, 0x500"),I("s_cselect_b32 s37, 0, s37")]
        p+=[I("s_mul_i32 s38, s37, 6144")]+([I("s_add_u32 s38, s38, 6144")] if rnd else [])
        for j in range(3):
            o.append(p+[D(f"buffer_load_dwordx4 {dW[j]}, {sWq}, s38 offen offset:{1024*j}{ntw} lds",tg)]); p=[]
        o.append([m0("s35",slot+12288),D(f"buffer_load_dwordx4 {dX[0]}, {sX}, s37 offen{ntx} lds",tg)])
        o.append([D(f"buffer_load_dwordx4 {dX[1]}, {sX}, s37 offen offset:1024{ntx} lds",tg)])
        o.append([I(f"s_mov_b32 m0, {hex(slot+20480)}"),I("s_mov_b64 exec, s[42:43]"),D(f"buffer_load_dwordx4 {dX[2]}, {sX}, s37 offen{ntx} lds",tg),I("s_mov_b64 exec, -1")])
        return o
    USE=[int(x) for x in str(OPT["use"]).split(".")]; ND=len(USE); KT=ND+3; XB=4096
    o1=KT+OPT["own1"]-1 if OPT["own1"] else 12
    SEQ=list(range(o1))+[12,13,14]+list(range(o1,12))+list(range(15,24)); IX={k:j for j,k in enumerate(SEQ)}
    def osl(j): return G[(j+1)%3] if j<KT else [XB,V0,K1][j-KT] if j<KT+3 else osl(j-6)
    def oslot(k): return osl(IX[k])
    def bset(k): return BSET[k%3] if k<12 else [off(Q,16*(k-12)+4*u) for u in range(4)]+[off(QX,8*(k-12)+4*t) for t in range(2)] if k<15 else [f"a{16*(k-15)+4*u}" for u in range(4)]
    def dmaO(k):
        slot=oslot(k); tg=("GO",k); o=[]; i=(k%12)//3
        for j in range(5):
            p=[]
            if j in(0,4): p.append(m0("s36",slot+(4096 if j else 0)))
            if j==0 and OPT["com"] and k<12: p.append(I(f"s_add_u32 s38, s49, {hex(k*81920)}"))
            elif j==0: p.append(I(f"s_add_u32 s38, s{75+k%12}, {hex((k//12)*16*192*1280)}" if OPT["wr"] and i and (k>=15 or OPT["wr"]==1) else f"s_add_u32 s38, s{48+i}, {hex((k//12)*16*192*1280+(k%3)*64*1280)}"))
            o.append(p+[D(f"buffer_load_dwordx4 {dO[j]}, {sWo}, s38 offen offset:{1024*(j%4)}{ntw} lds",tg)])
        return o
    def ldB(k):
        i=(k%12)//3; b=bset(k); base=(k//12)*16*OITEM; o=[]
        for u in range(6 if k<15 else 4):
            p=[]
            if OPT["com"] and k<12:
                if u in(0,4): p.append(I(f"s_add_u32 s59, s53, {hex(i*OITEM+(k%3)*(2048 if u else 4096))}"))
            elif u==0: p.append(I(f"s_add_u32 s59, s{84+k%12}, {hex(base)}" if OPT["wr"] and i and (k>=15 or OPT["wr"]==1) else f"s_add_u32 s59, s{52+i}, {hex(base+(k%3)*4096)}"))
            elif u==4: p.append(I(f"s_sub_u32 s59, s59, s{75+k%3}" if OPT["wr"] and i and (k>=15 or OPT["wr"]==1) else f"s_add_u32 s59, s{52+i}, {hex(base+(k%3)*2048)}"))
            o.append(p+[D(f"buffer_load_dwordx4 {T(b[u],4)}, {vM if u<4 else vE}, {sWS}, s59 offen offset:{1024*(u%4)}{bsc}",("B",k))])
        return o
    def dmaE(i):
        o=[]
        for j in range(2):
            p=[I("s_lshl_b32 s40, s32, 10")]+([I("s_and_b32 s40, s40, 0x400"),I("s_add_u32 s40, s40, 0x1000")] if j else [])
            p+=[m0("s40",V1+6144*(i-1)),I(f"s_add_u32 s40, s40, s{52+i}"),I(f"s_add_u32 s40, s40, {hex(16*OITEM)}"),D(f"buffer_load_dwordx4 {vE}, {sWS}, s40 offen{bsc} lds",("B",100+i))]
            o.append(p)
        return o
    def dmaE1(k):
        return [[I("s_lshl_b32 s40, s32, 10"),I("s_and_b32 s40, s40, 0x400"),m0("s40",V1+2048*(k-15)),I(f"s_add_u32 s40, s40, s{84+k%12}"),I(f"s_sub_u32 s40, s40, s{75+k%3}"),I(f"s_add_u32 s40, s40, {hex(16*OITEM)}"),D(f"buffer_load_dwordx4 {vE}, {sWS}, s40 offen{bsc} lds",("B",100+k))]]
    def f128(a,imm,pool="A"): return Frag(4,lambda r:[I(f"ds_read_b128 {T(r,4)}, {a} offset:{imm}")],pool)
    def ftr(a0,i0,a1,i1): return Frag(4,lambda r:[I(f"ds_read_b64_tr_b16 {T(r,2)}, {a0} offset:{i0}"),I(f"ds_read_b64_tr_b16 {T(off(r,2),2)}, {a1} offset:{i1}")])
    def mQK(it,t,c0):
        sl=24576*(it%2); S=[SA,SB][t]
        return [M(M32,S,f128(rK[ks%4],sl+t*12288+(ks>>2)*128),off(Q,4*ks),c0 if ks==0 else None) for ks in range(12)]
    def mQKx(it,c0): return [M(M16,SX,f128(rKx[t&1],24576*(it%2)+(t>>1)*128),off(QX,4*t),c0 if t==0 else None) for t in range(6)]
    def mPV(it,t,dbm=False):
        sl=24576*(it%2); S=[SA,SB][t]; o=[]
        for u,db in (sorted([(u,db) for u in range(2) for db in range(6)],key=lambda x:(x[1],x[0])) if dbm else [(u,db) for u in range(2) for db in range(6)]):
            im=sl+(db>>1)*128+(32*t+16*u)*384
            o.append(M(M32,off(O,16*db),ftr(rV[db&1],im,rV[db&1],im+8*384),off(S,8*u),"0" if(it==0 and t==0 and u==0) else None))
        return o
    def mPVx(it):
        o=[]
        for b2 in range(6):
            b=2*b2; im=24576*(it%2)+(b>>2)*128; f=ftr(rVx[b&3],im,rVx[(b+1)&3],im)
            for e_ in range(2): o.append(M(M16S,off(OX,4*(b+e_)),(f,2*e_),SX,"0" if it==0 else None,na=2))
        return o
    def mGQ(s,slot):
        b=GB if slot>=GB else V0 if slot>=V0 else 0; a=alt[b]; sl=slot-b
        xf=[f128(a[5+u],sl,"B") for u in range(2)]; xe=f128(a[7],sl,"B")
        mn=[[M(M32,off(GA,16*db),ftr(a[db&1],sl+(db>>1)*128+16*u*384,a[db&1],sl+(db>>1)*128+(16*u+4)*384),xf[u],"0" if(s==0 and u==0) else None) for db in range(6)] for u in range(2)]
        ex=[M(M16,off(GX,4*e_),ftr(a[2+e_],sl,a[2+e_],sl+4*384),xe,"0" if s==0 else None) for e_ in range(3)]
        return mn,ex
    def mGO(k):
        sl=oslot(k); b=bset(k); rO,*rOx=(rW[:1]+rWx) if sl>=GB else rK; sl-=GB if sl>=GB else XB
        mn=[[M(M32,off(GA,16*cb),ftr(rO,sl+64*cb+16*u*320,rO,sl+64*cb+(16*u+8)*320),b[u],"0" if(k==0 and u==0) else None) for cb in range(5)] for u in range(4)]
        if k>=15: b=b[:4]+[f128(vE,V1-49152+6144*(k//3-5)+2048*(k%3)+1024*t,"E") for t in range(2)]
        ex=[M(M16,off(GX,4*e_),ftr(rOx[e_],sl+32*t*320,rOx[e_],sl+(32*t+16)*320),b[4+t],"0" if(k==0 and t==0) else None) for t in range(2) for e_ in range(3)]
        return mn,ex
    def flat(me):
        mn,ex=me; o=[m for r in mn for m in r]; n=len(o); st=n//len(ex); res=[]
        for i,m in enumerate(o):
            res.append(m)
            if i%st==st-1 and ex[i//st:i//st+1]: res.append(ex[i//st])
        for x in ex:
            if x not in res: res.append(x)
        return res
    def ilv(a,b):
        o=[]
        for i in range(max(len(a),len(b))): o+=a[i:i+1]+b[i:i+1]
        return o
    PRE={}; HN=[0]; spine=[]; rs=[]; fills=[]; tagf={}; stubs=[]
    def half(ms,waits=(),deps=(),dma=(),lg=False,bar=True,extra=(),dlo=1,dsp=None):
        st=len(spine); extra=list(extra)+ts(f"h{HN[0]}"); dma=list(dma)+PFH.get(HN[0],[]); HN[0]+=1
        if bar:
            dp=list(deps)
            for t in waits: dp+=tagf.get(t,[])
            pb_,w2=PRE.get(HN[0]-1,([],[])); waits=list(waits)+w2
            for t in w2: dp+=tagf.get(t,[])
            rs.append(([WaitVM(waits)]+pb_+([I("s_waitcnt lgkmcnt(0)")] if lg else [])+[I("s_barrier")]+list(extra),st,dp))
        for m in ms:
            m.i=len(spine); spine.append(m)
            for f in m.fr:
                if not getattr(f,"q",0): f.q=1; rs.append((f,m.i))
        en=len(spine); n=len(dma)
        if n:
            span=max((en-st-dlo-3)*(dsp or OPT['dsp'])//100,1)
            for k,p in enumerate(dma):
                lo=min(st+dlo+k*span//n,en-2); f=Fill(p,lo,min(lo+3,en-1),"dma"); fills.append(f)
                for x in p:
                    if x.tag is not None and x.kind=="vmem": tagf.setdefault(x.tag,[]).append(f)
        return st,en
    def F(txts,lo,hi,ch):
        f=Fill([I(t) if isinstance(t,str) else t for t in (txts if isinstance(txts,list) else [txts])],lo,hi,ch); fills.append(f); return f
    def maxch(S,n,tm):
        o=[f"v_max3_f32 {tm}, {S}, {off(S,1)}, {off(S,2)}"]
        for k in range(3,n-1,2): o.append(f"v_max3_f32 {tm}, {tm}, {off(S,k)}, {off(S,k+1)}")
        o.append(f"v_max_f32 {tm}, {tm}, {off(S,n-1)}"); return o
    def red(x,t,op,n16):
        o=[f"v_mov_b32 {t}, {x}","s_nop 0",f"v_permlane32_swap_b32 {x}, {t}",f"{op} {x}, {x}, {t}"]
        if n16: o+=[f"v_mov_b32 {t}, {x}","s_nop 0",f"v_permlane16_swap_b32 {x}, {t}",f"{op} {x}, {x}, {t}"]
        return o
    def check(S,n,tm,sub,lo,hi,ch):
        for x in maxch(S,n,tm): F(x,lo,hi,ch)
        k=len(stubs); stubs.append((k,sub))
        F([f"v_cmp_lt_f32 vcc, 0x41000000, {tm}",f"s_cbranch_vccnz L_fb{k}",Label(f"L_rt{k}")],lo,hi,ch)
    def init(S,n,tm,t,N,lo,hi,hi2,ch):
        for x in maxch(S,n,tm): F(x,lo,hi,ch)
        F(red(tm,t,"v_max_f32",n==4),lo,hi,ch)
        for k in range(n): F(f"v_sub_f32 {off(N,k)}, 0, {tm}",lo,hi,ch)
        for k in range(n): F(f"v_sub_f32 {off(S,k)}, {off(S,k)}, {tm}",lo,hi2,ch)
    def smx(S,n,lo,his,ch,first,la,lb):
        for k in range(0,n,2):
            hi=his[k//8]; a,b=off(S,k),off(S,k+1)
            F([f"v_exp_f32 {a}, {a}",f"v_exp_f32 {b}, {b}"],lo,hi,ch)
            z=first and k==0
            F([f"v_add_f32 {la}, {'0' if z else la}, {a}",f"v_add_f32 {lb}, {'0' if (z and la!=lb) else lb}, {b}",f"v_cvt_pk_bf16_f32 {off(S,(k//8)*8+(k%8)//2)}, {a}, {b}"],lo,hi,ch)
    tg=[0]
    def cvt8(src,n,mul,dst,lo,hi,ch):
        t=off(SA,8*(tg[0]%4)) if ch!="ep" else [SB,off(SB,8),NM,off(NM,8)][tg[0]%4]; tg[0]+=1
        for k in range(0,n,4): F([f"v_accvgpr_read_b32 {off(t,k+j)}, {off(src,k+j)}" for j in range(4)],lo,hi,ch)
        if mul:
            pm="s[2:3]" if mul==CSC else T(mul,2)
            for k in range(0,n,4): F([f"v_pk_mul_f32 {T(off(t,k+j),2)}, {T(off(t,k+j),2)}, {pm} op_sel_hi:[1,0]" for j in (0,2)] if OPT["pk"] else [f"v_mul_f32 {off(t,k+j)}, {mul}, {off(t,k+j)}" for j in range(4)],lo,hi,ch)
        d=dst or t
        F([f"v_cvt_pk_bf16_f32 {off(d,j)}, {off(t,2*j)}, {off(t,2*j+1)}" for j in range(n//2)],lo,hi,ch)
        return d
    def qlast(rnd,waits,dma,deps=(),sl=(G[1],G[2])):
        (a,ax),(b,bx)=mGQ(18,sl[0]),mGQ(19,sl[1]); ms=ilv(ax,a[0][:3])+ilv(bx,a[0][3:])
        for db in range(6): ms+=[a[1][db],b[0][db],b[1][db]]
        st,en=half(ms,waits,deps,dma)
        lo=bx[2].i+1; ws=[]
        F([f"v_lshrrev_b32 {T4}, 4, {vE}",f"v_and_b32 {T5}, 15, {T4}",f"v_mul_u32_u24 {T5}, 0x190, {T5}",f"v_bfe_u32 {T4}, {T4}, 4, 2"],st,en,"ep")
        F([f"v_lshl_add_u32 {T3}, {T4}, 4, {T5}",f"v_lshl_add_u32 {T4}, {T4}, 3, {T5}","s_mul_i32 s40, s32, 96",f"v_add_u32 {T4}, s40, {T4}",f"v_add_u32 {T3}, {hex(G[0])}, {T3}",f"v_add_u32 {T4}, {hex(G[0])}, {T4}"],st,en,"ep")
        for e_ in range(3):
            d=cvt8(off(GX,4*e_),4,CSC,None,lo,en,"ep"); ws.append(F(f"ds_write_b64 {T4}, {T(d,2)} offset:{32*e_}",lo,en,"ep"))
        for db in range(6):
            for u in range(2): cvt8(off(GA,16*db+8*u),8,CSC,off(Q,8*db+4*u),b[1][db].i+1,en+2*db+u,"ep")
        return ws
    def att(rnd,gl,dm,ws,wt):
        for it in range(8):
            n=2*it; t0=16*rnd+n; g=gl.get(n,[])
            a=mQK(it,0,"0" if it==0 else NM); b=mQK(it,1,NM); x=mQKx(it,"0" if it==0 else NX)
            ms=a+g[:3]+b+ilv(x,g[3:9])+g[9:] if g else a+x+b
            st,en=half(ms,[("T",t0)]+wt.get(n,[]),ws if it==0 else (),dm.get(n,[]),lg=it==0)
            if it==0:
                for t in range(6): F(f"ds_read_b128 {T(off(QX,4*t),4)}, {T3} offset:{64*t}",st,x[0].i-2,"qx")
            pa,pb,px=mPV(it,0),mPV(it,1,it==7),mPVx(it); g=gl.get(n+1,[])
            st2,en2=half(pa+g+pb+px if it<7 else pa+g+px+pb,[("T",t0+1)]+wt.get(n+1,[]),(),dm.get(n+1,[]))
            if it==0:
                init(SA,16,TM,T2,NM,a[-1].i+1,b[0].i,pa[0].i,"sm"); init(SX,4,TMX,T5,NX,x[-1].i+1,px[0].i,px[0].i,"sx")
            else:
                check(SA,16,TM,"L_FA",a[-1].i+1,b[0].i,"sm"); check(SX,4,TMX,"L_FX",x[-1].i+1,px[0].i,"sx")
            smx(SA,16,a[-1].i+1,[pa[0].i,pa[6].i],"sm",it==0,LA_,LB_)
            check(SB,16,TM,"L_FB",b[-1].i+1,pa[0].i,"sm")
            smx(SB,16,b[-1].i+1,[pb[0].i,pb[6 if it<7 else 1].i],"sm",False,LA_,LB_)
            smx(SX,4,x[-1].i+1,[px[0].i],"sx",it==0,LX,LX)
        lo=px[0].i
        F(red(LX,T5,"v_add_f32",True),lo,en2,"sx")
        F([f"v_bfe_u32 {T4}, {vE}, 4, 4",f"v_lshlrev_b32 {T4}, 3, {T4}",f"v_add_u32 {T4}, {hex(SP)}, {T4}","s_lshl_b32 s40, s32, 7",f"v_add_u32 {T5}, s40, {T4}",f"v_mov_b32 {off(NX,1)}, {LX}"],lo,en2,"sx")
        wml=F(f"ds_write_b64 {T5}, {T(NX,2)}",lo,en2,"sx")
        F([f"v_add_f32 {LA_}, {LA_}, {LB_}"]+red(LA_,T2,"v_add_f32",False)+[f"v_rcp_f32 {LA_}, {LA_}"],pb[1].i,en2,"sm")
        return wml,pb
    def epi(rnd,wml,pb,g3,dm3,wt3):
        ob=rnd*16*OITEM; st0,en0=half(g3[0],wt3[0],[wml],dm3[0],lg=True)
        m4=R(QX,8);
        F([f"ds_read_b64 {T(m4[2*k],2)}, {T4} offset:{128*k}" for k in range(4)],st0-1,en0,"ex")
        F([f"v_min3_f32 {T5}, {m4[0]}, {m4[2]}, {m4[4]}",f"v_min_f32 {T5}, {T5}, {m4[6]}"]+[f"v_sub_f32 {m4[2*k]}, {T5}, {m4[2*k]}" for k in range(4)]+[f"v_sub_f32 {T5}, {T5}, {NX}"],st0,en0,"ex")
        F([f"v_exp_f32 {m4[2*k]}, {m4[2*k]}" for k in range(4)]+[f"v_exp_f32 {T5}, {T5}"],st0,en0,"ex")
        F([f"v_mul_f32 {LX}, {m4[0]}, {m4[1]}"]+[f"v_fmac_f32 {LX}, {m4[2*k]}, {m4[2*k+1]}" for k in range(1,4)]+[f"v_rcp_f32 {LX}, {LX}",f"v_lshrrev_b32 {T4}, 1, {vE}",f"v_mul_f32 {LX}, {LX}, {T5}",
           f"v_add_u32 {T4}, {hex(V1-24576)}, {T4}",f"v_add_u32 {T5}, s33, {T4}",*([f"v_add_u32 {T2}, s61, {T4}",f"v_add_u32 {T4}, s60, {T4}"] if OPT["xp"] else ["s_mul_i32 s40, s32, 1536",f"v_add_u32 {T4}, s40, {T4}"])],st0,en0,"ex")
        wr=[]; sts=[]; sf=[]; cv={}
        hold=lambda s: off(Q,4*s) if rnd else off(Q,16+4*s) if s<8 else off(PB,36+4*(s-8))
        def mainc(ss,lo,hi):
            for s in ss:
                cvt8(off(O,8*s),8,LA_,hold(s),lo,hi(s),"ex")
                sts.append((hi(s),[f"s_add_u32 s41, s52, {hex(ob+(s//4)*4096)}",I(f"buffer_store_dwordx4 {T(hold(s),4)}, {vM}, {sWS}, s41 offen offset:{1024*(s%4)}{osc}",("O",rnd))]))
        n1=len(g3[1]); nmf=OPT["nmf"] if rnd else 0; nm0=max(OPT.get("nm0",2),nmf)
        mainc(range(nmf),st0-1,lambda s:st0+2+3*s)
        for b in range(12):
            d=cvt8(off(OX,4*b),4,LX,None,st0,en0,"ex"); wr.append(F(f"ds_write_b64 {T5}, {T(d,2)} offset:{512*b}",st0,en0,"ex"))
        mainc(range(nmf,nm0),st0,lambda s:en0+2+2*(s-nmf))
        st1,en1=half(g3[1],wt3[1],wr,dm3[1],lg=True)
        rds=[]; xw=[]; xs=[]
        if rnd: F([f"v_subrev_u32 {x}, {hex(GB-XB)}, {a}" for a,x in zip(rW[:1]+rWx,rK)]+[f"v_subrev_u32 {T3}, {hex(49152-45056)}, {vE}"],st1,en1-8,"ex")
        XP=OPT["xp"]
        for e_ in range(4 if XP else 3):
            rds.append(F([f"ds_read_b64 {T(m4[2*k],2)}, {T2 if XP and e_>1 else T4} offset:{6144*k+512*(e_&1 if XP else e_)}" for k in range(4)],st1-1,en1-6,"ex"))
            a=R(off(QX,8),8)
            for k in range(4):
                for j in range(2):
                    x,y=(a[2*j],a[2*j+1]) if k==0 else (a[4],a[5])
                    F([f"v_lshlrev_b32 {x}, 16, {m4[2*k+j]}",f"v_and_b32 {y}, 0xffff0000, {m4[2*k+j]}"]+([f"v_add_f32 {a[2*j]}, {a[2*j]}, {x}",f"v_add_f32 {a[2*j+1]}, {a[2*j+1]}, {y}"] if k else []),st1,en1-4,"ex")
            d=off(QX,16+2*e_)
            F([f"v_cvt_pk_bf16_f32 {d}, {a[0]}, {a[1]}",f"v_cvt_pk_bf16_f32 {off(d,1)}, {a[2]}, {a[3]}"],st1,en1-2,"ex")
            if XP:
                if e_&1:
                    d=off(d,-2); q=e_>>1
                    xs.append((en1-2,[f"s_add_u32 s40, s52, s{60+q}",f"s_add_u32 s40, s40, {hex(ob)}"]+(["s_mov_b32 exec_lo, s62","s_mov_b32 exec_hi, s62"] if q else [])+[I(f"buffer_store_dwordx4 {T(d,4)}, {vE}, {sWS}, s40 offen{osc}",("O",rnd))]+(["s_mov_b64 exec, -1"] if q else [])))
                    if rnd: xw.append(F([f"v_add_u32 {T5}, s{60+q}, {T3}",f"ds_write_b128 {T5}, {T(d,4)} offset:{20480*q}"],st1,en1-1,"ex"))
                continue
            x=[f"s_add_u32 s40, s52, s{60+e_}",f"s_add_u32 s40, s40, {hex(ob)}",I(f"buffer_store_dwordx2 {T(d,2)}, {vE}, {sWS}, s40 offen{osc}",("O",rnd))]
            xs.append((en1-2,x))
            if rnd:
                xw.append(F([f"s_cmp_ge_u32 s{60+e_}, 0x1000","s_cselect_b32 s40, 0x5000, 0",f"s_add_u32 s40, s40, s{60+e_}",f"v_add_u32 {T2}, s40, {T3}",f"ds_write_b64 {T2}, {T(d,2)}"],st1,en1-1,"ex"))
        st2,en2=half(g3[2],wt3[2],rds+xw,dm3[2],lg=bool(rnd),dsp=25)
        if rnd: F([f"ds_read_b128 {T(off(QX,4*t),4)}, {T3} offset:{1024*t+(20480 if t>=4 else 0)}" for t in range(6)],st2,en2-2,"xr")
        mainc(range(nm0,12),st1,lambda s:en1+(en2-en1-2)*(s+1-nm0)//(12-nm0))
        if rnd:
            order=sts[:nm0]+xs+sts[nm0:]; p=st0 if nmf else st1; qxr=en2-2
            for k,(lo,x) in enumerate(order):
                p=max(p+OPT["ssp"],lo); hi=min(p+3,st2-1) if (lo,x) in xs else p+3
                sf.append(F(x,min(p,hi-1),hi,"st"))
            return sf,st2,en2
        qs=en2; nq=30
        p=st2+6; sp=OPT["ssp1"]
        for k,(lo,x) in enumerate(sts[:4]+xs+sts[4:]):
            nx_=len(xs); s_=k if k<4 else k-nx_; lim=qs+nq-2 if 4<=k<4+nx_ else qs+14+3*(2+s_//2) if s_<8 else qs+nq+62
            p=min(max(p+sp,lo),lim-1); sf.append(F(x,p,min(p+3,lim),"st"))
        return sf,st2,en2
    NEARLY=0
    hs=[G[0],G[1],G[2],K0,K1,V0,V1]; slot={s:hs[s%7] for s in range(17)}; slot.update({17:K1,18:V1,19:G[1]})
    prog=pre0+pre1+ts("p1")+pre+ts("k")
    NP=OPT["npre"]
    for s in range(NP):
        for p in dmaQ(0,s,slot[s]): prog+=p
        tagf[("GQ",0,s)]=[]; prog+=ts(f"d{s}")
        if s==OPT.get("tlbp",NP-1) and OPT.get("tlb"):
            tl=str(OPT["tlb"]); tch=lambda r,o: I(f"buffer_load_dword off, {r}, {o} lds",("F",60))
            prog+=[I(f"s_mov_b32 m0, {hex(SP+512)}")]
            if "k" in tl: prog+=[tch(sK,0),tch(sV,0)]
            if "K" in tl: prog+=[I("s_mov_b32 s39, 3145728"),tch(sK,"s39"),tch(sV,"s39")]
            if "w" in tl: prog+=[I("s_mul_i32 s39, s97, 983040"),tch(sWo,"s39"),I("s_add_u32 s39, s39, 3932160"),tch(sWo,"s39")]
            if "o" in tl: prog+=[I(x) for x in ["s_lshl_b32 s39, s96, 3","s_add_u32 s39, s39, s98","s_lshl_b32 s38, s39, 3","s_add_u32 s38, s38, s97",f"s_mul_i32 s38, s38, {4*OITEM}"]]+[tch(sWS,"s38"),I(f"s_add_u32 s38, s38, {16*OITEM}"),tch(sWS,"s38")]+[I(x) for x in
                   ["s_lshl_b32 s38, s97, 4","s_add_u32 s38, s38, s39","s_lshl_b32 s38, s38, 2","s_add_u32 s38, s38, s99",f"s_mul_i32 s38, s38, {PT}",f"s_add_u32 s38, s38, {hex(PART)}"]]+[tch(sWS,"s38"),tch(sDB,0)]
        if s==min(1,NP-1): prog+=pre2
    pre3+=[I("s_nop 0"),I("s_lshl_b32 s3, s32, 13"),I("s_sub_u32 s3, s3, 0x60000")]
    grp=[[x] for x in pre3v]+[[]]
    for x in pre3:
        if x.txt=="s_nop 0": grp.append([])
        else: grp[-1].append(x)
    grp+=[[x] for x in wo_regs()]
    if NP==7:
        for g_ in grp: prog+=g_
    else:
        tot=sum(map(len,grp)); acc=0; e0=OPT.get("pe0",100)
        for g_ in grp:
            acc+=len(g_); F(g_,0,(8+52*acc//e0 if acc<e0 else 60+(acc-e0)*206//(tot-e0)),"pro")
    prog+=ts("wo"); nx=NP
    for s in range(18):
        d=[]
        while nx<=min(s+6,16) and len(d)<6*OPT["nper"]: d+=dmaQ(0,nx,slot[nx]); nx+=1
        d+={11:lambda:dmaT(0),12:lambda:dmaQ(0,17,K1),13:lambda:dmaT(1),14:lambda:dmaQ(0,18,V1),16:lambda:dmaQ(0,19,G[1])}.get(s,list)()
        half(flat(mGQ(s,slot[s])),[("GQ",0,s)],(),d,dsp=80 if len(d)>6 else None)
    assert nx==17
    ws=qlast(0,[("GQ",0,18),("GQ",0,19)],dmaT(2),sl=(V1,G[1]))
    gl={n:flat(mGQ(n-1,G[n%3])) for n in range(1,16)}
    dm={n:(dmaQ(1,0,G[1]) if n==0 else [])+dmaQ(1,n+1,G[(n+2)%3])+dmaT(n+3) for n in range(16)}
    wml,pb=att(0,gl,dm,ws,{n:[("GQ",1,n-1)] for n in range(1,16)})
    sf,st2,en2=epi(0,wml,pb,[flat(mGQ(15+k,G[(16+k)%3])) for k in range(3)],[dmaQ(1,17,G[0]),dmaQ(1,18,G[1]),dmaQ(1,19,G[2])+dmaT(19)],[[("GQ",1,15+k)] for k in range(3)])
    ws=qlast(1,[("GQ",1,18),("GQ",1,19)],[]); tagf[("O",0)]=sf
    en=len(spine)
    F([f"v_mov_b32 {a}, {b}" for a,b in zip(dO,HO[:5])],en-20,en-2,"dma")
    def pubI(rnd): return [I(f"v_mov_b32 {VP}, {hex(1<<(16*rnd))}"),I("s_mov_b64 exec, s[44:45]"),I(f"buffer_atomic_add {VP}, off, {sDB}, 0 sc1",("A",rnd)),I("s_mov_b64 exec, -1")]
    def polI(rnd): return [I(f"buffer_load_dword {VP}, off, {sDB}, 0 sc1",("P",rnd))]
    def chkI(rnd): return [I(f"v_readfirstlane_b32 s40, {VP}"),I(f"s_bfe_u32 s40, s40, {hex(0x100000|16*rnd)}"),I("s_cmp_lt_u32 s40, s57"),I(f"s_cbranch_scc1 L_sp{rnd}"),Label(f"L_pr{rnd}")]
    ps=USE+[16,17,18]+list(range(19,19+24-KT)); pos=[ps[IX[k]] for k in range(24)]; P0=OPT["pubh"]; P2=19+OPT["pub2"]; C2=19+OPT["pol2"]+1
    NH=pos[-1]+1; dB={n:[] for n in range(NH)}; dW_={n:[] for n in range(NH)}; dT={n:(dmaT(16+n+3) if 1<=n<=12 else []) for n in range(NH)}
    L=lambda x:[int(y) for y in str(x).split(".")]
    NB=L(OPT["nb"]); NW=L(OPT["nw"]); NB2=L(OPT["nb2"]); PH=NB[0 if OPT['com'] else 3]; wtx={}
    for j,k in enumerate(SEQ):
        nw0=[0,0,1][j] if j<3 else ps[j-3]+1 if j<KT else 13+j-KT if j<KT+3 else ps[j-6]+1
        nw=NW[j] if j<len(NW) else nw0
        if C2-1-OPT.get("wdl",0)<=nw<C2-1: nw=C2-1+OPT.get("wdo",0)
        assert nw0<=nw<pos[k],("W",k,nw0,nw); dW_[nw]+=dmaO(k)
        if 12<=k<15: continue
        nb0=P0+1 if k<3 else pos[k-3]+1 if k<12 else C2
        nb=(NB[k] if k<len(NB) else nb0) if k<12 else C2+NB2[k-15]
        assert nb0<=nb<pos[k] and (k<4 or nb>=PH),("B",k,nb0,nb)
        if k>=15 and OPT["wr"]: dB[nb]+=dmaE1(k); wtx[k]=[("B",100+k)]
        elif k>=15 and k%3==0: dB[nb]+=dmaE(k//3-4); wtx[k]=[("B",100+k//3-4)]
        dB[nb]+=ldB(k)
    H0=HN[0]; PRE[H0+PH]=(chkI(0),[("P",0)]); PRE[H0+C2]=(chkI(1),[("P",1)]); PRE[H0+P0+1]=([],[("O",0)]); PRE[H0+P2+1]=([],[("O",1)])
    dm={n:dB[n]+dW_[n]+dT[n] for n in range(NH)}
    dm[P0+1]=[pubI(0)]+dm[P0+1]; dm[PH-1]=[polI(0)]+dm[PH-1]; dm[P2+1]=[pubI(1)]+dm[P2+1]; dm[C2-1]=[polI(1)]+dm[C2-1] if OPT.get("pfirst",1) else dm[C2-1]+[polI(1)]
    assert P0+1<PH-1 and P2+1<=C2-1
    gl={n:flat(mGO(k)) for k,n in enumerate(USE)}
    i0=len(spine)
    F([f"v_mov_b32 {a}, {b}" for a,b in zip([rO]+rOx,HO[5:])],i0-1,i0+20,"mv")
    wml,pb=att(1,gl,dm,ws,{n:[("GO",k)] for k,n in enumerate(USE)})
    sf,st2,en2=epi(1,wml,pb,[flat(mGO(ND+k)) for k in range(3)],[dm[16+k] for k in range(3)],[[("GO",ND+k)] for k in range(3)])
    tagf[("O",1)]=sf
    MG=OPT["mrg"]
    for k in SEQ[KT:25-MG]:
        mn,ex=mGO(k); wt=[("GO",k)]+wtx.get(k,[])
        if k<24-MG: ms=flat((mn,ex))
        elif MG==1: ms=ilv(ex,mn[0]+[mn[1][0]])+[mn[2][0],mn[3][0]]+[mn[u][cb] for cb in range(1,5) for u in range(1,4)]
        else:
            for k2 in range(k+1,24):
                assert not dm[pos[k2]]; m2,e2=mGO(k2); mn=mn+m2; ex=ex+e2; wt+=[("GO",k2)]+wtx.get(k2,[])
            cm=[mn[u][cb] for cb in range(5) for u in range(4*MG)]; ms=ilv(cm[:len(ex)],ex)+cm[len(ex):]
        st,en=half(ms,wt,(),dm[pos[k]],dsp=70 if pos[k]==C2-1 else None)
    F(["s_lshl_b32 s40, s32, 11","s_mul_i32 s41, s32, 12288",f"v_subrev_u32 {T4}, s40, {vM}",f"v_subrev_u32 {T5}, s41, {vM}",f"v_lshrrev_b32 {T5}, 1, {T5}","s_lshl_b32 s40, s32, 9","s_add_u32 s60, s58, s40",
       "s_and_b32 s40, s40, 0x200","s_add_u32 s62, s58, s40"],st,en,"fin")
    def finx():
        for e_ in range(3):
            d=cvt8(off(GX,4*e_),4,None,None,ex[-1].i+1,en,"fin")
            F([f"s_add_u32 s40, {'s62' if e_==2 else 's60'}, {hex(40960+2048*e_)}",f"buffer_store_dwordx2 {T(d,2)}, {T5}, {sWS}, s40 offen{psc}"],ex[-1].i+1,en,"fin")
    for s in range(10):
        if s==(0 if MG==1 else 2 if MG==2 else 2): finx()
        lo=min(mn[-1][s//2].i+1,en-1); d=cvt8(off(GA,8*s),8,None,None,lo,en,"fin")
        F([f"s_add_u32 s40, s58, {hex((s//4)*4096)}",f"buffer_store_dwordx4 {T(d,4)}, {T4}, {sWS}, s40 offen offset:{1024*(s%4)}{psc}"],lo,en,"fin")
    rs.sort(key=lambda x:x[1])
    pa_=Pool(PA,7)
    if OPT.get("bigp"): pa_.free+=[off(PB,24+4*k) for k in range(6)]
    prog+=schedule(spine,rs,fills,{"A":pa_,"B":Pool(PB,6),"E":Pool(PB,4)},LA=OPT["LA"])
    kl=OPT["kill"]
    if kl:
        km={"F":"T","T":"T","GQ":"G","GO":"W","B":"B","O":"S","A":"P","P":"P"}
        prog=[x for x in prog if not(x.kind=="vmem" and x.tag and km[x.tag[0]] in kl) and not(x.txt.startswith("s_cbranch_vccnz")) and not("P" in kl and "L_sp" in x.txt)]
        if "C" in kl:
            k0=[i for i,x in enumerate(prog) if x.txt=="s_barrier"][0]
            def cf(x):
                if x.txt.startswith("ds_read_b128") or "tr_b16" in x.txt:
                    p=x.txt.split(); return I(f"{p[0]} {p[1]} {vE if 'b128' in p[0] else VP} offset:{int(p[3][7:])&0x3c00}")
                return x
            prog=prog[:k0]+[I(f"v_lshrrev_b32 {VP}, 1, {vE}")]+[cf(x) for x in prog[k0:]]
        if "Z" in kl: prog=[I("s_mov_b32 s39, 0") if x.txt.startswith("s_mov_b32 s39") else x for x in prog]
        if "Y" in kl: prog=[I(x.txt.replace(" lds","").replace("dwordx4 ","dwordx4 "+T(off(PB,48),4)+", "),None) if (x.kind=="vmem" and x.txt.endswith("lds")) else x for x in prog]
        if "N" in kl: OPT["nolg"]=1
        if "R" in kl: prog=[x for x in prog if x.txt!="s_barrier"]
        if "V" in kl: prog=[x for x in prog if not x.txt.startswith(("v_exp","v_max3","v_add_f32","v_cvt"))]
        if "L" in kl: prog=[x for x in prog if not x.txt.startswith("ds_read")]
    prog+=ts()
    if OPT["ts"]:
        prog+=[I("s_waitcnt lgkmcnt(0)"),I("s_lshl_b32 s40, s63, 8"),I(f"s_add_u32 s40, s40, {hex(64<<20)}"),I("s_lshl_b32 s41, s32, 6"),I("s_add_u32 s40, s40, s41"),I("s_mov_b64 exec, 1")]
        for k in range(TS[0]): prog+=[I(f"v_mov_b32 {T2}, s{64+2*k}"),I(f"buffer_store_dword {T2}, off, {sWS}, s40 offset:{4*k}")]
    prog+=[Label("L_end"),I("s_endpgm")]
    st={}; out=finalize(prog,age=OPT.get("age",96),stats=st); print("k1",st,"mfma",len(spine),"cyc",sum(m.dur for m in spine),file=sys.stderr)
    txt=[x.txt for x in out]
    if OPT.get("nolg"): k0=txt.index("s_barrier"); txt=txt[:k0]+[x for x in txt[k0:-40] if "lgkmcnt" not in x]+txt[-40:]
    for k,sub in stubs: txt+=[f"L_fb{k}:",f"s_call_b64 s[46:47], {sub}",f"s_branch L_rt{k}"]
    for nm,S,N,n,tm,t,acc,na,ls in (("L_FA",SA,NM,16,TM,T2,O,96,[LA_,LB_]),("L_FB",SB,NM,16,TM,T2,O,96,[LA_,LB_]),("L_FX",SX,NX,4,TMX,T5,OX,48,[LX])):
        p=["s_nop 15","s_nop 15"]+red(tm,t,"v_max_f32",n==4)+[f"v_max_f32 {tm}, 0, {tm}"]
        p+=[f"v_sub_f32 {off(S,k)}, {off(S,k)}, {tm}" for k in range(n)]+[f"v_sub_f32 {off(N,k)}, {off(N,k)}, {tm}" for k in range(n)]
        p+=[f"v_exp_f32 {tm}, -{tm}","s_nop 1"]+[f"v_mul_f32 {x}, {x}, {tm}" for x in ls]
        for k in range(na): p+=[f"v_accvgpr_read_b32 {t}, {off(acc,k)}",f"v_mul_f32 {t}, {t}, {tm}",f"v_accvgpr_write_b32 {off(acc,k)}, {t}"]
        if nm=="L_FB":
            for r in R(SA,4)+R(off(SA,8),4):
                p+=[f"v_lshlrev_b32 {t}, 16, {r}",f"v_and_b32 {r}, 0xffff0000, {r}",f"v_mul_f32 {t}, {t}, {tm}",f"v_mul_f32 {r}, {r}, {tm}",f"v_cvt_pk_bf16_f32 {r}, {t}, {r}"]
        txt+=[nm+":"]+[x.txt for x in finalize([I(x) for x in p])]+["s_nop 3","s_setpc_b64 s[46:47]"]
    for r in range(2):
        txt+=[f"L_sp{r}:","s_sleep 4",f"buffer_load_dword {VP}, off, {sDB}, 0 sc1","s_waitcnt vmcnt(0)",f"v_readfirstlane_b32 s40, {VP}","s_nop 0",f"s_bfe_u32 s40, s40, {hex(0x100000|16*r)}","s_cmp_lt_u32 s40, s57",f"s_cbranch_scc1 L_sp{r}",f"s_branch L_pr{r}"]
    return txt+["L_last:"]

def k2():
    kl=SCM[OPT['k2l']]; ks_=SCM[OPT['k2s']]
    p=["s_cmp_ge_u32 s2, 0x100","s_cbranch_scc1 L_end2","s_load_dwordx2 s[4:5], s[0:1], 96","s_load_dwordx2 s[8:9], s[0:1], 80",
       "v_lshrrev_b32 v1, 6, v0","v_and_b32 v0, 63, v0","s_lshr_b32 s13, s2, 2","s_and_b32 s14, s2, 3","v_readfirstlane_b32 s12, v1",
       f"s_mul_i32 s15, s13, {PT}",f"s_add_u32 s15, s15, {hex(PART)}","s_mul_i32 s16, s14, 10240","s_lshl_b32 s17, s12, 11","s_add_u32 s16, s16, s17","s_add_u32 s16, s16, s15",
       "v_lshlrev_b32 v2, 4, v0","s_mov_b32 s6, 0x10000000","s_mov_b32 s7, 0x20000","s_mov_b32 s10, 2949120","s_mov_b32 s11, 0x20000","s_waitcnt lgkmcnt(0)"]
    for ks in range(4):
        p+=[f"buffer_load_dwordx4 v[{8+8*ks}:{11+8*ks}], v2, s[4:7], s16 offen{kl}",f"buffer_load_dwordx4 v[{12+8*ks}:{15+8*ks}], v2, s[4:7], s16 offen offset:1024{kl}",f"s_add_u32 s16, s16, {64*PT}"]
    p+=["s_and_b32 s18, s14, 1","s_mul_i32 s18, s18, 5","s_add_u32 s18, s18, s12","s_lshl_b32 s19, s18, 9","s_add_u32 s19, s19, s15","s_add_u32 s19, s19, 40960","v_lshlrev_b32 v3, 3, v0"]
    for ks in range(4): p+=[f"buffer_load_dwordx2 v[{40+2*ks}:{41+2*ks}], v3, s[4:7], s19 offen{kl}",f"s_add_u32 s19, s19, {64*PT}"]
    p+=["s_bfe_u32 s20, s13, 0x30002","s_mul_i32 s20, s20, 368640","s_lshr_b32 s21, s13, 5","s_mul_i32 s21, s21, 1280","s_add_u32 s20, s20, s21","s_and_b32 s21, s13, 3","s_mul_i32 s21, s21, 320","s_add_u32 s20, s20, s21",
        "s_mul_i32 s21, s14, 81920","s_add_u32 s21, s21, s20","s_lshl_b32 s22, s12, 6","s_add_u32 s21, s21, s22",
        "v_and_b32 v4, 31, v0","v_mul_u32_u24 v4, 0xa00, v4","v_lshrrev_b32 v5, 5, v0","v_lshl_add_u32 v4, v5, 4, v4",
        "s_lshl_b32 s22, s18, 5","s_add_u32 s22, s22, s20","s_add_u32 s22, s22, 327680",
        "v_and_b32 v5, 15, v0","v_mul_u32_u24 v5, 0xa00, v5","v_lshrrev_b32 v6, 4, v0","v_lshl_add_u32 v5, v6, 3, v5"]
    def summ(b,st,j):
        o=[f"v_lshlrev_b32 v6, 16, v{b+j}",f"v_and_b32 v7, 0xffff0000, v{b+j}"]
        for ks in range(1,4): r=b+st*ks+j; o+=[f"v_lshlrev_b32 v1, 16, v{r}",f"v_and_b32 v{r}, 0xffff0000, v{r}","v_add_f32 v6, v6, v1",f"v_add_f32 v7, v7, v{r}"]
        return o+[f"v_cvt_pk_bf16_f32 v{b+j}, v6, v7"]
    for u in range(2):
        for j in range(4): p+=summ(8+4*u,8,j)
        p.append(f"buffer_store_dwordx4 v[{8+4*u}:{11+4*u}], v4, s[8:11], s21 offen offset:{32*u}{ks_}")
    p+=["s_cmp_ge_u32 s14, 2","s_cbranch_scc1 L_end2"]+summ(40,2,0)+summ(40,2,1)+[f"buffer_store_dwordx2 v[40:41], v5, s[8:11], s22 offen{ks_}"]
    return [x.txt for x in finalize([I(x) for x in p])]+["L_end2:","s_endpgm"]

ref=open(f"cdna_kernels/{NAME}.s.ref").read().split("\n")
hdr=[x for x in ref if x.startswith(";") and "@launch" not in x and "Override" not in x and "grid=ceil" not in x]
o=hdr+[f"; @launch kernel={NAME}_kernel grid=(256,1,1) block=(256,1,1) lds=163840",*([] if OPT.get("nok2") else ["; @launch kernel=reduce_kernel grid=(256,1,1) block=(320,1,1) lds=0"]),'.amdgcn_target "amdgcn-amd-amdhsa--gfx950"',".text"]
for nm,body in ((NAME+"_kernel",k1()),("reduce_kernel",k2())):
    o+=[f".globl {nm}",".p2align 8",f".type {nm},@function",nm+":"]+body
o.append('.section .rodata,"a"')
for nm,nv,ao in ((NAME+"_kernel",512,256),("reduce_kernel",48,48)):
    o+=[".p2align 6",f".amdhsa_kernel {nm}",f"  .amdhsa_next_free_vgpr {nv}","  .amdhsa_next_free_sgpr 102",f"  .amdhsa_accum_offset {ao}","  .amdhsa_group_segment_fixed_size 0",
        "  .amdhsa_kernarg_size 104","  .amdhsa_user_sgpr_count 2","  .amdhsa_user_sgpr_kernarg_segment_ptr 1","  .amdhsa_system_sgpr_workgroup_id_x 1",".end_amdhsa_kernel"]
open(sys.argv[1],"w").write("\n".join(o)+"\n")
```
